```python
import torch

def _softmax(x, axis=-1):
    return torch.softmax(x, dim=axis)

def _gelu(x):
    return torch.nn.functional.gelu(x, approximate='tanh')

def _silu(x):
    return torch.nn.functional.silu(x)

def _sigmoid(x):
    return torch.sigmoid(x)

def _layernorm(x, axis=-1, eps=1e-05):
    m = x.mean(dim=axis, keepdim=True)
    v = x.var(dim=axis, keepdim=True, unbiased=False)
    return (x - m) / torch.sqrt(v + eps)

def _scatter_add(tgt, idx, src, axis=0):
    return tgt.clone().index_add_(axis, idx, src)

def _segment_sum(src, seg, n):
    out = torch.zeros((n,) + src.shape[1:], dtype=src.dtype)
    return out.index_add_(0, seg, src)

def _pad(x, pw):
    flat = tuple((v for pair in reversed(pw) for v in pair))
    return torch.nn.functional.pad(x, flat)
kernel_name = 'recurrent_scan__softmax_full_mha__mixer_gmlp__prompt'

def setup_inputs():

    _w = lambda a: (lambda t: t.to(torch.bfloat16) if t.is_floating_point() else t)(torch.as_tensor(a))

    def _A_setup():
        B, S, D = (1, 2048, 512)
        return {'x': _w((lambda *s: torch.randn(*s, dtype=torch.bfloat16) * 0.05)(B, S, D)), 'wqkv': _w((lambda *s: torch.randn(*s, dtype=torch.bfloat16) * 0.05)(D, 3 * D)), 'wo': _w((lambda *s: torch.randn(*s, dtype=torch.bfloat16) * 0.05)(D, D))}
    _A_in = _A_setup()

    def _B_setup():
        B, S, D, F = (1, 2048, 512, 1792)
        Fh = F // 2
        return {'x': _w((lambda *s: torch.randn(*s, dtype=torch.bfloat16) * 0.05)(B, S, D)), 'w_in': _w((lambda *s: torch.randn(*s, dtype=torch.bfloat16) * 0.8)(D, 2 * Fh)), 'w_sp': _w(0.01 * (lambda *s: torch.randn(*s, dtype=torch.bfloat16) * 0.8)(S, S)), 'b_sp': _w(1.0 + 0.01 * (lambda *s: torch.randn(*s, dtype=torch.bfloat16) * 0.05)(S)), 'w_out': _w((lambda *s: torch.randn(*s, dtype=torch.bfloat16) * 0.05)(Fh, D))}
    _B_in = _B_setup()
    return {'A_x': _A_in['x'], 'A_wqkv': _A_in['wqkv'], 'A_wo': _A_in['wo'], 'B_x': _B_in['x'], 'B_w_in': _B_in['w_in'], 'B_w_sp': _B_in['w_sp'], 'B_b_sp': _B_in['b_sp'], 'B_w_out': _B_in['w_out']}

def reference(A_x, A_wqkv, A_wo, B_x, B_w_in, B_w_sp, B_b_sp, B_w_out):

    def _A_ref(x, wqkv, wo):
        B, S, D = x.shape
        H = 32
        Dh = D // H
        qkv = (lambda x, *d: x.permute(*d))((x @ wqkv).reshape(B, S, 3, H, Dh), 2, 0, 3, 1, 4)
        q, k, v = (qkv[0], qkv[1], qkv[2])
        scale = Dh ** (-0.5)
        scores = torch.einsum('bhqd,bhkd->bhqk', q, k) * scale
        p = _softmax(scores, axis=-1)
        o = torch.einsum('bhqk,bhkd->bhqd', p, v)
        return (lambda x, *d: x.permute(*d))(o, 0, 2, 1, 3).reshape(B, S, D) @ wo

    def _B_ref(x, w_in, w_sp, b_sp, w_out):
        B, S, D = x.shape
        F = w_in.shape[-1]
        Fh = F // 2
        z = _gelu(torch.einsum('bsd,df->bsf', x, w_in))
        z1 = z[..., :Fh].clone()
        z2 = _layernorm(z[..., Fh:], axis=-1)
        g = torch.einsum('ts,bsf->btf', w_sp, z2) + b_sp[None, :, None]
        return torch.einsum('bsf,fd->bsd', z1 * g, w_out)
    x = A_x
    xn = _layernorm(x, axis=-1)
    s = _A_ref(xn, A_wqkv, A_wo)
    g = _silu(_B_ref(xn, B_w_in, B_w_sp, B_b_sp, B_w_out))
    return x + s * g
```

```python
import re

TRANS = ("v_exp_f32", "v_log_f32", "v_rcp_f32", "v_rsq_f32", "v_sqrt_f32", "v_sin_f32", "v_cos_f32", "v_rcp_iflag_f32",
         "v_exp_f16", "v_rcp_f16")
REG_RE = re.compile(r"^(-|\|)?(abs\()?([vsa])(?:(\d+)|\[(\d+):(\d+)\])\)?\|?$")

def parse_reg(tok):
    tok = tok.strip()
    if tok in ("vcc",): return {("s", 106), ("s", 107)}
    if tok == "vcc_lo": return {("s", 106)}
    if tok == "vcc_hi": return {("s", 107)}
    if tok == "exec": return {("x", 0), ("x", 1)}
    if tok == "exec_lo": return {("x", 0)}
    if tok == "exec_hi": return {("x", 1)}
    if tok == "m0": return {("m", 0)}
    m = REG_RE.match(tok)
    if not m: return set()
    k = m.group(3)
    if m.group(4) is not None: return {(k, int(m.group(4)))}
    return {(k, i) for i in range(int(m.group(5)), int(m.group(6)) + 1)}

def split_ops(s):
    out, depth, cur = [], 0, ""
    for ch in s:
        if ch in "[(": depth += 1
        if ch in "])": depth -= 1
        if ch == "," and depth == 0:
            out.append(cur.strip()); cur = ""
        else: cur += ch
    if cur.strip(): out.append(cur.strip())
    return out

class Ins:
    __slots__ = ("text", "op", "ops", "mods", "w", "r", "kind", "label", "target", "srcs", "passes", "nop")
    def __init__(self, text):
        self.text = text
        self.label = None; self.target = None; self.w = set(); self.r = set(); self.kind = "other"; self.srcs = []; self.passes = 0; self.nop = 1
        t = text.split(";")[0].strip()
        if t.endswith(":"):
            self.label = t[:-1]; self.kind = "label"; self.op = ""; self.nop = 0; return
        if t.startswith(".") or not t:
            self.kind = "dir"; self.op = ""; self.nop = 0; return
        parts = t.split(None, 1)
        op = parts[0]; self.op = op
        rest = parts[1] if len(parts) > 1 else ""
        ops = split_ops(rest)
        mods = []
        if ops:
            last = ops[-1].split()
            ops[-1] = last[0]; mods = last[1:]
        self.ops = ops; self.mods = mods
        R = [parse_reg(o) for o in ops]
        base = re.sub(r"_(e32|e64|dpp|sdwa)$", "", op)
        if op == "s_nop":
            self.kind = "nop"; self.nop = int(ops[0], 0) + 1
        elif op.startswith("v_mfma"):
            self.kind = "mfma"; self.w = R[0]; self.srcs = R[1:4]; self.r = R[1] | R[2] | R[3]
            if "32x32x16" in op or "32x32x8" in op: self.passes = 8
            elif "16x16x32" in op or "16x16x16" in op: self.passes = 4
            else: raise ValueError("unknown mfma " + op)
        elif op.startswith("v_cmp"):
            self.kind = "valu"; self.w = R[0]; self.r = set().union(*R[1:])
            if op.startswith("v_cmpx"): self.w = self.w | {("x", 0), ("x", 1)}
        elif base in ("v_readfirstlane_b32", "v_readlane_b32"):
            self.kind = "valu"; self.w = R[0]; self.r = set().union(*R[1:])
        elif op.startswith("v_permlane") and "swap" in op:
            self.kind = "valu"; self.w = R[0] | R[1]; self.r = R[0] | R[1]
        elif base in ("v_add_co_u32", "v_sub_co_u32", "v_addc_co_u32", "v_subb_co_u32", "v_mad_u64_u32", "v_div_scale_f32"):
            self.kind = "valu"; self.w = R[0] | R[1]; self.r = set().union(*R[2:])
        elif op.startswith("v_"):
            self.kind = "valu"; self.w = R[0]; self.r = set().union(*R[1:]) if len(R) > 1 else set()
            if base.startswith(("v_fmac", "v_dot2c", "v_pk_fmac", "v_mac", "v_writelane")): self.r |= R[0]
            if base == "v_cndmask_b32" and len(ops) == 3: self.r |= parse_reg("vcc")
            if "dst_unused:UNUSED_PRESERVE" in mods: self.r |= R[0]
            if op.endswith("_dpp") or any(m.startswith(("row_", "quad_perm", "wave_")) for m in mods): self.r |= R[0]
        elif op.startswith(("buffer_load", "global_load")):
            self.kind = "vmem"
            if "lds" in mods or "_lds_" in op:
                self.r = set().union(*R) | {("m", 0)}; self.kind = "dma"
            else:
                self.w = R[0]; self.r = set().union(*R[1:])
        elif op.startswith(("buffer_store", "global_store", "buffer_atomic", "global_atomic")):
            self.kind = "vmem"; self.r = set().union(*R)
            if "atomic" in op and "sc0" in mods: self.w = R[0]
        elif op.startswith(("buffer_wbl2", "buffer_inv")):
            self.kind = "vmem"
        elif op.startswith("ds_"):
            self.kind = "ds"
            if op.startswith(("ds_read", "ds_bpermute", "ds_permute", "ds_swizzle")) or "_rtn" in op:
                self.w = R[0]; self.r = set().union(*R[1:])
            else: self.r = set().union(*R)
        elif op.startswith(("s_load", "s_buffer_load", "s_memtime", "s_memrealtime")):
            self.kind = "smem"; self.w = R[0]; self.r = set().union(*R[1:]) if len(R) > 1 else set()
        elif op.startswith(("s_cbranch", "s_branch")):
            self.kind = "branch"; self.target = ops[0]
        elif op in ("s_endpgm",):
            self.kind = "end"
        elif op.startswith(("s_cmp", "s_bitcmp", "s_waitcnt", "s_barrier", "s_setprio", "s_sleep", "s_setreg")):
            self.kind = "salu"; self.r = set().union(*R) if R else set()
        elif op.startswith("s_"):
            self.kind = "salu"; self.w = R[0]; self.r = set().union(*R[1:]) if len(R) > 1 else set()
            if "saveexec" in op: self.w |= {("x", 0), ("x", 1)}
        else:
            raise ValueError("unknown instruction: " + text)

    def is_trans(self): return re.sub(r"_(e32|e64)$", "", self.op) in TRANS
    def is_dot(self): return self.op.startswith("v_dot")
    def is_dpp(self): return self.kind == "valu" and (self.op.endswith("_dpp") or any(m.startswith(("row_", "quad_perm", "wave_")) for m in self.mods))
    def wide_store_data(self):
        if self.kind == "vmem" and ("store_dwordx4" in self.op or "store_dwordx3" in self.op):
            return parse_reg(self.ops[0]) if self.op.startswith("buffer") else parse_reg(self.ops[1])
        return set()

def vg(s): return {r for r in s if r[0] in "va"}
def sg(s): return {r for r in s if r[0] == "s"}

def required(p, c):
    need = 0
    if p.kind == "valu":
        pw = vg(p.w)
        if c.kind == "mfma" and pw & c.r: need = max(need, 3 if p.is_dot() else 2)
        if c.kind == "valu":
            if p.is_trans() and not c.is_trans() and pw & c.r: need = max(need, 1)
            if p.is_trans() and c.is_trans() and pw & c.r: need = max(need, 1)
            if c.is_dpp() and pw & c.r: need = max(need, 2)
            if c.op.startswith("v_permlane") and pw & c.r: need = max(need, 2)
            if c.op.startswith(("v_readfirstlane", "v_readlane")) and pw & c.r: need = max(need, 1)
            if sg(p.w) & sg(c.r):
                need = max(need, 4 if c.op.startswith(("v_readlane", "v_writelane")) else 2)
            if p.is_dot() and pw & (c.r | c.w):
                same = (p.op == c.op)
                if same:
                    R = [parse_reg(o) for o in c.ops]
                    ab = R[1] | R[2]
                    if pw & ab: need = max(need, 3)
                else: need = max(need, 3)
            if not p.op.startswith("v_pk_") and any(m.startswith(("dst_sel", "op_sel")) for m in p.mods) and pw & (c.r | c.w): need = max(need, 1)
        if c.kind in ("vmem", "dma", "ds"):
            if sg(p.w) & sg(c.r): need = max(need, 5)
            if p.is_trans() and pw & c.r: need = max(need, 1)
            if p.is_dot() and pw & c.r: need = max(need, 3)
        if ("x", 0) in p.w or ("x", 1) in p.w:
            if c.kind == "mfma": need = max(need, 4)
            if c.kind == "valu" and (c.is_dpp()): need = max(need, 5)
            if c.kind == "valu" and c.op.startswith(("v_readfirstlane", "v_readlane", "v_writelane", "v_permlane")): need = max(need, 4)
        if c.kind == "salu" and sg(p.w) & sg(c.r): need = max(need, 1)
        if c.kind == "smem" and sg(p.w) & sg(c.r): need = max(need, 5)
    if p.kind == "mfma":
        n_rw = {4: 8, 8: 12}[p.passes]; n_ov = {4: 6, 8: 10}[p.passes]; n_war = {4: 3, 8: 7}[p.passes]
        if c.kind == "mfma":
            if p.w & (c.srcs[0] | c.srcs[1]): need = max(need, n_rw)
            if p.w & c.srcs[2]:
                if not (p.w == c.srcs[2] and p.passes == c.passes): need = max(need, n_ov)
            elif p.w & c.w: need = max(need, n_ov)
        elif c.kind in ("valu", "vmem", "dma", "ds"):
            if p.w & (c.r | c.w): need = max(need, n_rw)
            if c.kind == "valu" and p.srcs[2] & c.w: need = max(need, n_war)
    if p.kind == "salu" and ("m", 0) in p.w and c.kind == "dma": need = max(need, 1)
    ws = p.wide_store_data()
    if ws and ws & c.w: need = max(need, 2 if c.kind in ("valu", "mfma") else 1)
    return need

class Prog:
    def __init__(self):
        self.ins = []
    def __call__(self, text):
        for line in text.split("\n"):
            line = line.strip()
            if not line or line.startswith(";"): continue
            self.ins.append(Ins(line))
    def label(self, name): self(name + ":")
    def fix_hazards(self, verbose=False):
        total = 0
        while True:
            ins = self.ins
            labels = {x.label: i for i, x in enumerate(ins) if x.kind == "label"}
            preds = [[] for _ in ins]
            for i, x in enumerate(ins):
                if x.kind == "branch":
                    if x.target in labels: preds[labels[x.target]].append(i)
                    if x.op != "s_branch" and i + 1 < len(ins): preds[i + 1].append(i)
                elif x.kind == "end": pass
                elif i + 1 < len(ins): preds[i + 1].append(i)
            fix = None
            for i, c in enumerate(ins):
                if c.kind in ("label", "dir", "nop", "branch", "end"): continue
                worst = 0
                stack = [(p, 0) for p in preds[i]]
                seen = {}
                while stack:
                    j, dist = stack.pop()
                    if dist >= 12: continue
                    if seen.get(j, 99) <= dist: continue
                    seen[j] = dist
                    p = ins[j]
                    if p.kind not in ("label", "dir", "nop", "branch", "end"):
                        need = required(p, c)
                        if need > dist: worst = max(worst, need - dist)
                    nd = dist + p.nop
                    for q in preds[j]: stack.append((q, nd))
                if worst > 0:
                    fix = (i, worst); break
            if fix is None: break
            i, n = fix
            if verbose: print(f"hazard: inserting s_nop {n-1} before: {ins[i].text}")
            ins.insert(i, Ins(f"s_nop {n-1}"))
            total += 1
        return total
    def text(self):
        out = []
        for x in self.ins:
            out.append(x.text if x.kind in ("label",) else "  " + x.text)
        return "\n".join(out)
    def max_regs(self):
        mv = ms = -1
        for x in self.ins:
            for k, n in (x.r | x.w):
                if k == "v": mv = max(mv, n)
                if k == "s" and n < 106: ms = max(ms, n)
        return mv, ms

class Regs:
    def __init__(self, kind, start=0, limit=256):
        self.kind = kind; self.next = start; self.limit = limit; self.names = {}
    def alloc(self, name, n=1, align=1):
        if n >= 4 and align == 1: align = 4 if self.kind == "s" else 2
        elif n == 2 and align == 1: align = 2
        b = (self.next + align - 1) // align * align
        self.next = b + n
        assert self.next <= self.limit, f"out of {self.kind} regs at {name}"
        self.names[name] = (b, n)
        return R(self.kind, b, n)

class R:
    def __init__(self, kind, base, n): self.kind = kind; self.base = base; self.n = n
    def __str__(self): return f"{self.kind}{self.base}" if self.n == 1 else f"{self.kind}[{self.base}:{self.base+self.n-1}]"
    def __getitem__(self, i):
        if isinstance(i, slice):
            a = i.start or 0; b = i.stop if i.stop is not None else self.n
            assert 0 <= a < b <= self.n
            return R(self.kind, self.base + a, b - a)
        assert 0 <= i < self.n, (i, self.n)
        return R(self.kind, self.base + i, 1)
    __repr__ = __str__

def kernel_text(name, prog, vgprs=None, sgprs=None):
    return f".globl {name}\n.p2align 8\n.type {name},@function\n{name}:\n" + prog.text() + "\n"

def descriptor(name, vgprs, sgprs):
    acc = (vgprs + 3) // 4 * 4
    return f""".p2align 6
.amdhsa_kernel {name}
  .amdhsa_next_free_vgpr {vgprs}
  .amdhsa_next_free_sgpr {sgprs}
  .amdhsa_accum_offset {acc}
  .amdhsa_group_segment_fixed_size 0
  .amdhsa_kernarg_size 88
  .amdhsa_user_sgpr_count 2
  .amdhsa_user_sgpr_kernarg_segment_ptr 1
  .amdhsa_system_sgpr_workgroup_id_x 1
.end_amdhsa_kernel
"""
```

```python
from asmlib import *
from common import *

NBUF = 4

def emit_attn(p, s_wg="s2", prof=False, exp_opts=()):
    V = Regs("v", 1, 128); S = Regs("s", 4, 100)
    vLane = V.alloc("lane"); vKa = V.alloc("ka"); vKn = V.alloc("kn"); vVa = V.alloc("va"); vVn = V.alloc("vn")
    vL16 = V.alloc("l16"); vVl = V.alloc("vl"); vT = V.alloc("t", 4, 4); vDm = V.alloc("dmaoff")
    Q = V.alloc("Q", 4, 4); K = V.alloc("K", 4, 4); V0 = V.alloc("V0", 4, 4); V1 = [V.alloc("V1a", 4, 4), V.alloc("V1b", 4, 4)]
    P = V.alloc("P", 8, 4)
    Sb = [V.alloc("Sa", 16, 4), V.alloc("Sb", 16, 4)]
    O = V.alloc("O", 16, 4); NM = V.alloc("NM", 16, 4)
    sWs = S.alloc("ws", 2); srdK = S.alloc("srdK", 4); srdV = S.alloc("srdV", 4); srdW = S.alloc("srdW", 4)
    sMask = S.alloc("mask", 2); sHead = S.alloc("head"); sQt = S.alloc("qt"); sWave = S.alloc("wave"); sT = S.alloc("t", 4)
    sC = S.alloc("c"); sCur = S.alloc("cur"); sNxt = S.alloc("nxt"); sDst = S.alloc("dst"); sSrc = S.alloc("src"); sW1k = S.alloc("w1k")
    if prof: p("s_memtime s[60:61]\ns_memrealtime s[62:63]")
    p(f"""
    s_load_dwordx2 {sWs}, s[0:1], {KA_WS}
    v_lshrrev_b32 {vT[0]}, 6, v0
    v_and_b32 {vLane}, 63, v0
    v_readfirstlane_b32 {sWave}, {vT[0]}
    s_and_b32 {sT[0]}, {s_wg}, 7
    s_lshr_b32 {sT[1]}, {s_wg}, 3
    s_lshl_b32 {sHead}, {sT[0]}, 2
    s_lshr_b32 {sT[2]}, {sT[1]}, 3
    s_add_u32 {sHead}, {sHead}, {sT[2]}
    s_and_b32 {sT[1]}, {sT[1]}, 7
    s_lshl_b32 {sQt}, {sT[1]}, 3
    s_add_u32 {sQt}, {sQt}, {sWave}            ; q tile 0..63
    s_lshl_b32 {sW1k}, {sWave}, 10
    v_lshlrev_b32 {vL16}, 4, {vLane}            ; lane*16
    s_lshl_b32 {sT[3]}, {sHead}, 16             ; head*64KB
    s_mov_b32 {sMask[0]}, 0xffff
    s_mov_b32 {sMask[1]}, 0xffff
    v_add_u32 {vDm}, {sW1k}, {vL16}
    s_waitcnt lgkmcnt(0)
    s_add_u32 {srdK[0]}, {sWs[0]}, {sT[3]}
    s_addc_u32 {srdK[1]}, {sWs[1]}, 0
    s_add_u32 {srdV[0]}, {srdK[0]}, {WS_V}
    s_addc_u32 {srdV[1]}, {srdK[1]}, 0
    s_add_u32 {srdK[0]}, {srdK[0]}, {WS_K}
    s_addc_u32 {srdK[1]}, {srdK[1]}, 0
    s_and_b32 {srdK[1]}, {srdK[1]}, 0xffff
    s_and_b32 {srdV[1]}, {srdV[1]}, 0xffff
    s_mov_b32 {srdK[2]}, 65536
    s_mov_b32 {srdK[3]}, 0x20000
    s_mov_b32 {srdV[2]}, 65536
    s_mov_b32 {srdV[3]}, 0x20000
    s_mov_b32 {srdW[0]}, {sWs[0]}
    s_and_b32 {srdW[1]}, {sWs[1]}, 0xffff
    s_mov_b32 {srdW[2]}, {WS_END}
    s_mov_b32 {srdW[3]}, 0x20000
    """)
    for c in range(NBUF - 1):
        p(f"""
        s_add_u32 m0, {sW1k}, {c*16384}
        s_mov_b32 {sSrc}, {c*8192}
        buffer_load_dwordx4 {vDm}, {srdK}, {sSrc} offen lds
        s_add_u32 m0, {sW1k}, {c*16384+8192}
        s_nop 0
        buffer_load_dwordx4 {vDm}, {srdV}, {sSrc} offen lds
        """)
        if c == 0:
            p(f"""
            s_lshl_b32 {sT[0]}, {sQt}, 10
            s_add_u32 {sT[0]}, {sT[0]}, {sT[3]}
            buffer_load_dwordx4 {Q}, {vL16}, {srdW}, {sT[0]} offen
            """)
    p(f"""
    v_and_b32 {vT[0]}, 15, {vLane}
    v_lshlrev_b32 {vT[0]}, 4, {vT[0]}
    v_lshrrev_b32 {vT[1]}, 5, {vLane}
    v_lshlrev_b32 {vT[1]}, 8, {vT[1]}
    v_add_u32 {vVl}, {vT[0]}, {vT[1]}
    v_add_u32 {vVl}, 8192, {vVl}
    v_mov_b32 {vKa}, {vL16}
    v_mov_b32 {vVa}, {vVl}
    v_add_u32 {vKn}, 16384, {vL16}
    v_add_u32 {vVn}, 16384, {vVl}
    """)
    ones = "0x3f803f80"
    if "allones" in exp_opts:
        p(f"v_mov_b32 {vT[0]}, {ones}")
    else:
        p(f"""
        v_and_b32 {vT[1]}, 27, {vLane}
        v_cmp_eq_u32 vcc, 16, {vT[1]}
        v_mov_b32 {vT[2]}, {ones}
        v_cndmask_b32 {vT[0]}, 0, {vT[2]}, vcc
        """)
    for r in list(range(4)):
        p(f"v_mov_b32 {V0[r]}, {vT[0]}\nv_mov_b32 {V1[0][r]}, {vT[0]}\nv_mov_b32 {V1[1][r]}, {vT[0]}")
    for i in range(16): p(f"v_mov_b32 {O[i]}, 0")
    for i in range(4): p(f"v_mov_b32 {P[4+i]}, 0")
    p(f"""
    s_mov_b32 {sC}, 0
    s_mov_b32 {sNxt}, 16384
    s_mov_b32 {sDst}, {(NBUF-1)*16384}
    s_mov_b32 {sSrc}, {(NBUF-1)*8192}
    s_waitcnt vmcnt({2*(NBUF-2)})
    s_barrier
    ds_read_b128 {K}, {vKa}
    s_mov_b64 exec, {sMask}
    ds_read_b128 {V0}, {vVa}
    ds_read_b128 {V1[0]}, {vVa} offset:512
    s_mov_b64 exec, -1
    s_waitcnt lgkmcnt(2)
    v_mfma_f32_32x32x16_bf16 {Sb[1]}, {K}, {Q}, 0
    """)
    s1 = Sb[1]
    p(f"v_max3_f32 {vT[0]}, {s1[0]}, {s1[1]}, {s1[2]}")
    for i in range(3, 15, 2): p(f"v_max3_f32 {vT[0]}, {vT[0]}, {s1[i]}, {s1[i+1]}")
    p(f"""
    v_max_f32 {vT[0]}, {vT[0]}, {s1[15]}
    v_mov_b32 {vT[1]}, {vT[0]}
    v_permlane32_swap_b32 {vT[0]}, {vT[1]}
    v_max_f32 {vT[0]}, {vT[0]}, {vT[1]}
    """)
    for i in range(16): p(f"v_sub_f32 {NM[i]}, 0, {vT[0]}")
    p(f"""
    v_mfma_f32_32x32x16_bf16 {Sb[0]}, {K}, {Q}, {NM}
    ds_read_b128 {K}, {vKa} offset:1024
    s_waitcnt lgkmcnt(0)
    s_nop 7
    """)
    if prof: p("s_memtime s[64:65]\ns_waitcnt lgkmcnt(0)")
    p.label("L_attn_loop")
    for t in range(8):
        sc = Sb[t & 1]; sn = Sb[(t + 1) & 1]
        e = lambda i: f"v_exp_f32 {sc[i]}, {sc[i]}" if "noexp" not in exp_opts else "s_nop 1"
        c = lambda j: f"v_cvt_pk_bf16_f32 {P[j]}, {sc[2*j]}, {sc[2*j+1]}"
        if t == 6:
            p(f"""
            s_waitcnt vmcnt(2)
            s_barrier
            s_add_u32 m0, {sDst}, {sW1k}
            s_add_u32 {sT[0]}, {sDst}, 8192
            buffer_load_dwordx4 {vDm}, {srdK}, {sSrc} offen lds
            s_add_u32 m0, {sT[0]}, {sW1k}
            s_add_u32 {sDst}, {sDst}, 16384
            buffer_load_dwordx4 {vDm}, {srdV}, {sSrc} offen lds
            s_and_b32 {sDst}, {sDst}, {NBUF*16384-1}
            s_add_u32 {sSrc}, {sSrc}, 8192
            """)
        if "prio" in exp_opts and t % 2 == 0: p(f"s_setprio {3 - ((t + 2) % 8) // 2}")
        if "prio1" in exp_opts and t in (6, 1, 4): p(f"s_setprio { {6: 3, 1: 2, 4: 1}[t] }")
        kt = t + 2; vt = t + 1
        kaddr = f"{vKa} offset:{kt*1024}" if kt < 8 else f"{vKn} offset:{(kt-8)*1024}"
        vaddr = (lambda off: f"{vVa} offset:{vt*1024+off}") if vt < 8 else (lambda off: f"{vVn} offset:{(vt-8)*1024+off}")
        p(f"""
        s_waitcnt lgkmcnt(2)
        v_mfma_f32_32x32x16_bf16 {sn}, {K}, {Q}, {NM}
        ds_read_b128 {K}, {kaddr}
        {e(0)}
        {e(1)}
        {e(2)}
        {c(0)}
        {e(3)}
        {e(4)}
        {c(1)}
        {e(5)}
        v_mfma_f32_32x32x16_bf16 {O}, {V1[(t+1)&1]}, {P[4:8]}, {O}
        {e(6)}
        {c(2)}
        {e(7)}
        {e(8)}
        {c(3)}
        {e(9)}
        {e(10)}
        {c(4)}
        s_waitcnt lgkmcnt(2)
        v_mfma_f32_32x32x16_bf16 {O}, {V0}, {P[0:4]}, {O}
        s_mov_b64 exec, {sMask}
        ds_read_b128 {V0}, {vaddr(0)}
        ds_read_b128 {V1[(t+1)&1]}, {vaddr(512)}
        s_mov_b64 exec, -1
        {e(11)}
        {e(12)}
        {c(5)}
        {e(13)}
        {e(14)}
        {e(15)}
        {c(6)}
        {c(7)}
        """)
    if "nopv" in exp_opts:
        p.ins = [x for x in p.ins if not (x.kind == "mfma" and x.ops[0] == str(O))]
    if "prio" in exp_opts: pass
    p(f"""
    v_mov_b32 {vKa}, {vKn}
    v_mov_b32 {vVa}, {vVn}
    s_add_u32 {sNxt}, {sNxt}, 16384
    s_and_b32 {sNxt}, {sNxt}, {NBUF*16384-1}
    s_add_u32 {sC}, {sC}, 1
    v_add_u32 {vKn}, {sNxt}, {vL16}
    v_add_u32 {vVn}, {sNxt}, {vVl}
    s_cmp_lt_u32 {sC}, 8
    s_cbranch_scc1 L_attn_loop
    v_mfma_f32_32x32x16_bf16 {O}, {V1[1]}, {P[4:8]}, {O}
    s_waitcnt vmcnt(0) lgkmcnt(0)
    """)
    p.label("L_attn_fin")
    p(f"v_add_f32 {vT[0]}, {O[8]}, abs({O[0]})")
    for i in range(1, 8): p(f"v_add_f32 {vT[0]}, {vT[0]}, abs({O[i]})")
    p(f"""
    v_mov_b32 {vT[1]}, 0x5f800000
    v_cmp_nlt_f32 vcc, {vT[0]}, {vT[1]}
    s_cmp_eq_u32 {sC}, 8
    s_cselect_b64 {sT[0:2]}, vcc, 0
    s_cmp_lg_u64 {sT[0:2]}, 0
    s_cbranch_scc1 L_attn_slow
    v_rcp_f32 {vT[0]}, {O[8]}
    v_and_b32 {vT[1]}, 31, {vLane}
    v_lshlrev_b32 {vT[1]}, 10, {vT[1]}
    v_lshrrev_b32 {vT[2]}, 5, {vLane}
    v_lshlrev_b32 {vT[2]}, 4, {vT[2]}
    v_add_u32 {vT[1]}, {vT[1]}, {vT[2]}
    s_lshl_b32 {sT[0]}, {sQt}, 15
    s_lshl_b32 {sT[1]}, {sHead}, 5
    s_add_u32 {sT[0]}, {sT[0]}, {sT[1]}
    s_add_u32 {sT[0]}, {sT[0]}, {WS_O}
    """)
    for i in range(8): p(f"v_mul_f32 {O[i]}, {O[i]}, {vT[0]}")
    for j in range(4): p(f"v_cvt_pk_bf16_f32 {P[j]}, {O[2*j]}, {O[2*j+1]}")
    p(f"""
    v_permlane32_swap_b32 {P[0]}, {P[2]}
    v_permlane32_swap_b32 {P[1]}, {P[3]}
    """)
    p(f"""
    buffer_store_dwordx4 {P[0:4]}, {vT[1]}, {srdW}, {sT[0]} offen
    """)
    if prof:
        p(f"""
        s_memtime s[66:67]
        s_memrealtime s[68:69]
        s_waitcnt lgkmcnt(0)
        v_mov_b32 {O[0]}, s60
        v_mov_b32 {O[1]}, s64
        v_mov_b32 {O[2]}, s66
        s_sub_u32 s68, s68, s62
        v_mov_b32 {O[3]}, s68
        s_lshl_b32 {sT[0]}, {s_wg}, 3
        s_add_u32 {sT[0]}, {sT[0]}, {sWave}
        s_lshl_b32 {sT[0]}, {sT[0]}, 4
        s_add_u32 {sT[0]}, {sT[0]}, {WS_ST}
        v_mov_b32 {vT[1]}, 0
        buffer_store_dwordx4 {O[0:4]}, {vT[1]}, {srdW}, {sT[0]} offen
        """)
    p("s_endpgm")
    p.label("L_attn_slow")
    s0 = Sb[0]
    p(f"""
    s_mov_b32 {sC}, 9
    s_mov_b32 {sSrc}, 0
    v_mov_b32 {vT[0]}, 0xff800000
    """)
    p.label("L_attn_slow1")
    p(f"""
    buffer_load_dwordx4 {K}, {vL16}, {srdK}, {sSrc} offen
    s_waitcnt vmcnt(0)
    v_mfma_f32_32x32x16_bf16 {s0}, {K}, {Q}, 0
    s_add_u32 {sSrc}, {sSrc}, 1024
    """)
    for i in range(0, 16, 2): p(f"v_max3_f32 {vT[0]}, {vT[0]}, {s0[i]}, {s0[i+1]}")
    p(f"""
    s_cmp_lt_u32 {sSrc}, 65536
    s_cbranch_scc1 L_attn_slow1
    v_mov_b32 {vT[1]}, {vT[0]}
    v_permlane32_swap_b32 {vT[0]}, {vT[1]}
    v_max_f32 {vT[0]}, {vT[0]}, {vT[1]}
    v_subrev_u32 {vT[2]}, 8192, {vVl}
    s_mov_b32 {sSrc}, 0
    """)
    for i in range(16): p(f"v_sub_f32 {NM[i]}, 0, {vT[0]}\nv_mov_b32 {O[i]}, 0")
    p.label("L_attn_slow2")
    p(f"""
    buffer_load_dwordx4 {K}, {vL16}, {srdK}, {sSrc} offen
    s_mov_b64 exec, {sMask}
    buffer_load_dwordx4 {V0}, {vT[2]}, {srdV}, {sSrc} offen
    buffer_load_dwordx4 {V1[0]}, {vT[2]}, {srdV}, {sSrc} offen offset:512
    s_mov_b64 exec, -1
    s_waitcnt vmcnt(0)
    v_mfma_f32_32x32x16_bf16 {s0}, {K}, {Q}, {NM}
    s_add_u32 {sSrc}, {sSrc}, 1024
    """)
    for i in range(16): p(f"v_exp_f32 {s0[i]}, {s0[i]}")
    for j in range(8): p(f"v_cvt_pk_bf16_f32 {P[j]}, {s0[2*j]}, {s0[2*j+1]}")
    p(f"""
    v_mfma_f32_32x32x16_bf16 {O}, {V0}, {P[0:4]}, {O}
    v_mfma_f32_32x32x16_bf16 {O}, {V1[0]}, {P[4:8]}, {O}
    s_cmp_lt_u32 {sSrc}, 65536
    s_cbranch_scc1 L_attn_slow2
    s_branch L_attn_fin
    """)
    return V.next, S.next
```

```python
MB = 1 << 20
WS_Q   = 0 * MB
WS_K   = 2 * MB
WS_V   = 4 * MB
WS_Z1  = 6 * MB
WS_Z2  = 10 * MB
WS_O   = 14 * MB
WS_H   = 16 * MB
WS_ST  = 20 * MB
WS_G   = 21 * MB
WS_END = 24 * MB
KA_X, KA_WQKV, KA_WO, KA_BX, KA_WIN, KA_WSP, KA_BSP, KA_WOUT, KA_OUT, KA_DBG, KA_WS = [8 * i for i in range(11)]
LOG2E = 1.4426950408889634
import struct
def f32(x): return "0x%08x" % struct.unpack("<I", struct.pack("<f", x))[0]
```

```python
from asmlib import *
from common import *
import math

NS = 7
SLOT = 21504
OFF_B = 8192; OFF_S = 20480
MISC = NS * SLOT
L_RS  = MISC
L_RS4 = MISC + 1024
L_NM4 = MISC + 1536
L_CS  = MISC + 2048
L_ACC = MISC + 3072
L_CNT = MISC + 4096
L_R2  = MISC + 4352
LDS_BYTES = MISC + 5376
NST = 16
GA = -2.0 * math.sqrt(2.0 / math.pi) * LOG2E
GB = GA * 0.044715
QS = 0.25 * LOG2E

def emit_k1(p, prof=False, opts=()):
    V = Regs("v", 1, 256); S = Regs("s", 4, 100)
    vLane = V.alloc("lane"); vT = V.alloc("t", 12, 4)
    sP = S.alloc("ptrs", 12, 4)
    srdW = S.alloc("srdW", 4); srdX = S.alloc("srdX", 4); srdB = S.alloc("srdB", 4); srdI = S.alloc("srdI", 4); srdD = S.alloc("srdD", 4)
    sWave = S.alloc("wave"); sI = S.alloc("i"); sJ = S.alloc("j"); sT = S.alloc("t", 6, 2); sN = S.alloc("n")
    sBig = S.alloc("big"); sSml = S.alloc("sml")
    if prof: p("s_memtime s[90:91]\ns_memrealtime s[92:93]\nv_mov_b32 v250, 0")
    p(f"""
    s_load_dwordx2 {sP[0:2]}, s[0:1], {KA_WS}
    s_load_dwordx2 {sP[2:4]}, s[0:1], {KA_X}
    s_load_dwordx2 {sP[4:6]}, s[0:1], {KA_WQKV}
    s_load_dwordx2 {sP[6:8]}, s[0:1], {KA_WIN}
    s_load_dwordx2 {sP[8:10]}, s[0:1], {KA_DBG}
    v_lshrrev_b32 {vT[0]}, 6, v0
    v_and_b32 {vLane}, 63, v0
    v_readfirstlane_b32 {sWave}, {vT[0]}
    s_lshr_b32 {sT[1]}, s2, 3
    s_and_b32 {sT[0]}, s2, 1
    s_lshl_b32 {sI}, {sT[0]}, 3
    s_and_b32 {sT[2]}, {sT[1]}, 7
    s_add_u32 {sI}, {sI}, {sT[2]}
    s_lshl_b32 {sJ}, s2, 1
    s_and_b32 {sJ}, {sJ}, 12
    s_lshr_b32 {sT[2]}, {sT[1]}, 3
    s_add_u32 {sJ}, {sJ}, {sT[2]}
    s_and_b32 {sT[0]}, {sJ}, 7
    s_lshl_b32 {sBig}, {sT[0]}, 6
    s_mul_i32 {sSml}, {sT[0]}, 48
    s_cmp_lt_u32 {sJ}, 8
    s_mov_b32 {sT[0]}, 384
    s_cmov_b32 {sT[0]}, 896
    s_cselect_b32 {sT[1]}, 0, {896+512}
    s_add_u32 {sBig}, {sBig}, {sT[0]}
    s_add_u32 {sSml}, {sSml}, {sT[1]}
    s_waitcnt lgkmcnt(0)
    """)
    for srd, i, size in ((srdW, 0, WS_END), (srdX, 2, 2048*1024), (srdI, 6, 512*3584), (srdD, 8, 256)):
        p(f"s_mov_b32 {srd[0]}, {sP[i]}\ns_and_b32 {srd[1]}, {sP[i+1]}, 0xffff\ns_mov_b32 {srd[2]}, {size}\ns_mov_b32 {srd[3]}, 0x20000")
    p(f"s_cmp_ge_u32 {sWave}, 4\ns_cbranch_scc1 L_k1_load")
    sRh = S.alloc("rh"); sCh = S.alloc("ch"); sSlot = S.alloc("slot")
    vAb = V.alloc("ab", 2); vBb = V.alloc("bb"); vSb = V.alloc("sb")
    vAa = V.alloc("aa", 2); vBa = V.alloc("ba"); vSa = V.alloc("sa")
    vOnes = V.alloc("ones")
    XS = V.alloc("xs", 2); XQ = V.alloc("xq", 2); CS = V.alloc("cs", 4, 4)
    A = [[V.alloc(f"A{b}{r}", 4, 4) for r in range(4)] for b in range(2)]
    B = [[V.alloc(f"B{b}{u}", 4, 4) for u in range(7)] for b in range(2)]
    ACC = [[V.alloc(f"acc{u}{r}", 4, 4) for r in range(4 if u < 6 else 2)] for u in range(7)]
    p(f"""
    s_lshr_b32 {sRh}, {sWave}, 1
    s_and_b32 {sCh}, {sWave}, 1
    v_and_b32 {vT[0]}, 15, {vLane}               ; m
    v_lshrrev_b32 {vT[1]}, 4, {vLane}            ; g
    v_bfe_u32 {vT[2]}, {vLane}, 2, 1             ; q&1
    v_bfe_u32 {vT[3]}, {vLane}, 3, 1             ; q>>1
    v_lshlrev_b32 {vT[2]}, 1, {vT[2]}
    v_mul_u32_u24 {vT[3]}, 3, {vT[3]}
    v_xor_b32 {vT[2]}, {vT[2]}, {vT[3]}
    v_xor_b32 {vT[2]}, {vT[2]}, {vT[1]}
    v_lshl_add_u32 {vT[2]}, {vT[0]}, 2, {vT[2]}
    v_lshlrev_b32 {vT[2]}, 4, {vT[2]}
    s_lshl_b32 {sT[0]}, {sRh}, 12
    s_lshl_b32 {sT[1]}, {sCh}, 11
    s_add_u32 {sT[0]}, {sT[0]}, {sT[1]}
    v_add_u32 {vAb[0]}, {sT[0]}, {vT[2]}
    v_xor_b32 {vAb[1]}, 2048, {vAb[0]}
    v_lshrrev_b32 {vT[2]}, 5, {vLane}
    v_lshlrev_b32 {vT[2]}, 10, {vT[2]}
    v_and_b32 {vT[3]}, 3, {vLane}
    v_lshl_add_u32 {vT[2]}, {vT[3]}, 3, {vT[2]}
    v_bfe_u32 {vT[4]}, {vLane}, 3, 2
    v_lshl_add_u32 {vT[2]}, {vT[4]}, 6, {vT[2]}
    v_bfe_u32 {vT[4]}, {vLane}, 2, 1             ; r0
    v_lshl_add_u32 {vT[2]}, {vT[4]}, 8, {vT[2]}
    v_xor_b32 {vT[4]}, {sCh}, {vT[4]}
    v_lshl_add_u32 {vT[2]}, {vT[4]}, 5, {vT[2]}
    v_add_u32 {vBb}, {OFF_B}, {vT[2]}
    v_and_b32 {vT[2]}, 31, {vLane}
    v_lshlrev_b32 {vT[2]}, 3, {vT[2]}
    v_lshrrev_b32 {vT[3]}, 5, {vLane}
    v_lshl_add_u32 {vT[2]}, {vT[3]}, 9, {vT[2]}
    v_add_u32 {vSb}, {OFF_S}, {vT[2]}
    v_mov_b32 {vOnes}, 0x3f803f80
    """)
    for r in (XS[0], XS[1], XQ[0], XQ[1], CS[0], CS[1], CS[2], CS[3]): p(f"v_mov_b32 {r}, 0")
    for u in range(7):
        for a in ACC[u]:
            for i in range(4): p(f"v_mov_b32 {a[i]}, 0")
    def read_list(buf):
        L = []
        for r in range(4): L.append(f"ds_read_b128 {A[buf][r]}, {vAa[r >> 1]} offset:{(r & 1) * 1024}")
        for u in range(6):
            for s in range(2): L.append(f"ds_read_b64_tr_b16 {B[buf][u][2*s:2*s+2]}, {vBa} offset:{u*2048 + s*512}")
        for s in range(2): L.append(f"ds_read_b64_tr_b16 {B[buf][6][2*s:2*s+2]}, {vSa} offset:{s*256}")
        return L
    def addr_update():
        p(f"""
        v_add_u32 {vAa[0]}, {sSlot}, {vAb[0]}
        v_add_u32 {vAa[1]}, {sSlot}, {vAb[1]}
        v_add_u32 {vBa}, {sSlot}, {vBb}
        v_add_u32 {vSa}, {sSlot}, {vSb}
        s_add_u32 {sSlot}, {sSlot}, {SLOT}
        s_cmp_eq_u32 {sSlot}, {NS*SLOT}
        s_cselect_b32 {sSlot}, 0, {sSlot}
        """)
    def mfma_list(buf):
        L = []
        for u in range(7):
            for r in range(len(ACC[u])):
                a, b = (A[buf][r], B[buf][u]) if u == 2 else (B[buf][u], A[buf][r])
                L.append(f"v_mfma_f32_16x16x32_bf16 {ACC[u][r]}, {a}, {b}, {ACC[u][r]}")
        return L
    def dot_list(buf, rh):
        L = []
        if "nodot" in opts: return L
        for i in range(4):
            for r in range(2):
                L.append(f"v_dot2c_f32_bf16 {XS[r]}, {A[buf][r][i]}, {vOnes}")
                L.append(f"v_dot2c_f32_bf16 {XQ[r]}, {A[buf][r][i]}, {A[buf][r][i]}")
            units = (0, 1, 2, 6) if rh == 0 else (3, 4, 5)
            for n, u in enumerate(units):
                L.append(f"v_dot2c_f32_bf16 {CS[n]}, {B[buf][u][i]}, {vOnes}")
        return L
    def stage(buf, rh, last):
        M = mfma_list(buf); D = dot_list(buf, rh); Rd = [] if last else read_list(buf ^ 1)
        p("s_waitcnt lgkmcnt(0)")
        if not last:
            p(M.pop(0)); addr_update(); p(M.pop(0)); p("s_barrier")
            if prof: p(f"s_memtime s[94:95]\ns_waitcnt lgkmcnt(0)\ns_mov_b32 m0, s96\ns_sub_u32 s94, s94, s90\ns_add_u32 s96, s96, 1\nv_writelane_b32 v250, s94, m0")
        n = len(M)
        for k in range(n):
            if Rd: p(Rd.pop(0))
            p(M[k])
            nd = (len(D) + (n - k) - 1) // (n - k)
            for _ in range(nd): p(D.pop(0))
        assert not Rd and not D
    p(f"s_mov_b32 {sSlot}, 0\ns_mov_b32 {sN}, 0")
    if prof: p("s_mov_b32 s96, 0")
    addr_update()
    p("s_barrier")
    for x in read_list(0): p(x)
    p(f"s_cmp_eq_u32 {sRh}, 1\ns_cbranch_scc1 L_k1_c1")
    for rh in range(2):
        p.label(f"L_k1_c{rh}")
        stage(0, rh, False); stage(1, rh, False)
        p(f"s_add_u32 {sN}, {sN}, 1\ns_cmp_lt_u32 {sN}, {NST//2 - 1}\ns_cbranch_scc1 L_k1_c{rh}")
        stage(0, rh, False); stage(1, rh, True)
        if rh == 0: p("s_branch L_k1_epi")
    p.label("L_k1_epi")
    if prof: p(f"s_memtime s[94:95]\ns_waitcnt lgkmcnt(0)\ns_sub_u32 s94, s94, s90\nv_writelane_b32 v250, s94, 16")
    T = R("v", A[0][0].base, 88)
    assert B[1][6].base + 4 == T.base + 88
    def red_all(x, t):
        p(f"""
        v_mov_b32 {t}, {x}
        s_nop 1
        v_permlane32_swap_b32 {x}, {t}
        v_add_f32 {x}, {x}, {t}
        v_mov_b32 {t}, {x}
        s_nop 1
        v_permlane16_swap_b32 {x}, {t}
        v_add_f32 {x}, {x}, {t}
        """)
    p(f"""
    s_nop 2
    v_permlane32_swap_b32 {XS[0]}, {XS[1]}
    v_permlane32_swap_b32 {XQ[0]}, {XQ[1]}
    v_permlane32_swap_b32 {CS[0]}, {CS[2]}
    v_permlane32_swap_b32 {CS[1]}, {CS[3]}
    v_add_f32 {XS[0]}, {XS[0]}, {XS[1]}         ; lanes<32: tile slot0 partial(g&1) ; lanes>=32: slot1
    v_add_f32 {XQ[0]}, {XQ[0]}, {XQ[1]}
    v_add_f32 {CS[0]}, {CS[0]}, {CS[2]}         ; lo: cs0 ; hi: cs2
    v_add_f32 {CS[1]}, {CS[1]}, {CS[3]}         ; lo: cs1 ; hi: cs3
    s_nop 0
    v_permlane16_swap_b32 {XS[0]}, {XQ[0]}      ; XS0 = [S.r0, Q.r0, S.r2, Q.r2] ; XQ0 = [S.r1, Q.r1, S.r3, Q.r3]
    v_permlane16_swap_b32 {CS[0]}, {CS[1]}
    v_add_f32 {XS[0]}, {XS[0]}, {XQ[0]}         ; rows: [sum t0, sq t0, sum t1, sq t1]
    v_add_f32 {CS[0]}, {CS[0]}, {CS[1]}         ; rows: [cs0, cs1, cs2, cs3]
    v_mov_b32 {XQ[0]}, {XS[0]}
    s_nop 1
    v_permlane16_swap_b32 {XS[0]}, {XQ[0]}      ; XS0 = [sum t0, sum t0, sum t1, sum t1] ; XQ0 = [sq t0, sq t0, sq t1, sq t1]
    v_mul_f32 {XS[0]}, {f32(1/512)}, {XS[0]}    ; mu
    v_mul_f32 {vT[0]}, {XS[0]}, {XS[0]}
    v_fma_f32 {vT[0]}, {XQ[0]}, {vT[2]}, -{vT[0]}
    """.replace("{vT[2]}", str(vT[2])))
    idx = len(p.ins) - 3
    p.ins.insert(idx, Ins(f"v_mov_b32 {vT[2]}, {f32(1/512)}"))
    sRow0 = S.alloc("row0"); sRow1 = S.alloc("row1")
    p(f"""
    v_max_f32 {vT[0]}, 0, {vT[0]}
    v_add_f32 {vT[0]}, {f32(1e-5)}, {vT[0]}
    v_rsq_f32 {vT[0]}, {vT[0]}                  ; rs
    s_lshl_b32 {sRow0}, {sRh}, 2
    s_lshl_b32 {sT[0]}, {sCh}, 1
    s_add_u32 {sRow0}, {sRow0}, {sT[0]}
    s_xor_b32 {sRow1}, {sRow0}, 2
    v_mul_f32 {vT[1]}, {XS[0]}, {vT[0]}
    v_sub_f32 {vT[1]}, 0, {vT[1]}               ; nm = -mu*rs
    ; local row = (sRow0 + (lane>>5))*16 + (lane&15)
    v_lshrrev_b32 {vT[2]}, 5, {vLane}
    v_add_u32 {vT[2]}, {sRow0}, {vT[2]}
    v_and_b32 {vT[3]}, 15, {vLane}
    v_lshl_add_u32 {vT[2]}, {vT[2]}, 4, {vT[3]}
    v_lshlrev_b32 {vT[4]}, 3, {vT[2]}
    v_lshlrev_b32 {vT[5]}, 2, {vT[2]}
    v_add_u32 {vT[4]}, {L_RS}, {vT[4]}
    v_add_u32 {vT[5]}, {L_RS4}, {vT[5]}
    ds_write_b64 {vT[4]}, {vT[0:2]}
    ds_write_b32 {vT[5]}, {vT[0]}
    ds_write_b32 {vT[5]}, {vT[1]} offset:512
    ; colsum rows g: rh=0 -> pairs 0,1,2 and single(12) ; rh=1 -> pairs 3,4,5, (g=3 unused -> dump slot 13)
    v_lshrrev_b32 {vT[6]}, 4, {vLane}           ; g
    s_mul_i32 {sT[0]}, {sRh}, 3
    v_add_u32 {vT[7]}, {sT[0]}, {vT[6]}
    v_lshl_add_u32 {vT[7]}, {vT[7]}, 1, {sCh}   ; unit id = pair*2+ch
    s_add_u32 {sT[0]}, {sRh}, 12
    v_mov_b32 {vT[8]}, {sT[0]}
    v_cmp_eq_u32 vcc, 3, {vT[6]}
    v_cndmask_b32 {vT[7]}, {vT[7]}, {vT[8]}, vcc
    v_lshl_add_u32 {vT[7]}, {vT[7]}, 4, {vT[3]}
    v_lshlrev_b32 {vT[7]}, 2, {vT[7]}
    ds_write_b32 {vT[7]}, {CS[0]} offset:{0}
    """.replace(f"ds_write_b32 {vT[7]}, {CS[0]} offset:0", f"v_add_u32 {vT[7]}, {L_CS}, {vT[7]}\nds_write_b32 {vT[7]}, {CS[0]}"))
    RN = [T[2*r:2*r+2] for r in range(4)]
    CU = [T[8+4*u:12+4*u] for u in range(7)]
    R4 = [T[36+4*r:40+4*r] for r in range(4)]
    N4 = [T[52+4*r:56+4*r] for r in range(4)]
    W = T[68:88]
    vZo = V.alloc("zo"); vQo = V.alloc("qo"); vVo = V.alloc("vo"); vRa = V.alloc("ra", 2)
    p(f"""
    v_lshlrev_b32 {vT[8]}, 3, {vT[3]}               ; m*8
    s_lshl_b32 {sT[0]}, {sRow0}, 7
    s_lshl_b32 {sT[1]}, {sRow1}, 7
    v_add_u32 {vRa[0]}, {sT[0]}, {vT[8]}
    v_add_u32 {vRa[1]}, {sT[1]}, {vT[8]}
    v_add_u32 {vRa[0]}, {MISC}, {vRa[0]}
    v_add_u32 {vRa[1]}, {MISC}, {vRa[1]}
    v_lshlrev_b32 {vT[9]}, 4, {vT[6]}               ; g*16
    s_lshl_b32 {sT[0]}, {sRow0}, 6
    s_lshl_b32 {sT[1]}, {sRow1}, 6
    v_add_u32 {vT[10]}, {sT[0]}, {vT[9]}
    v_add_u32 {vT[11]}, {sT[1]}, {vT[9]}
    v_add_u32 {vT[10]}, {MISC}, {vT[10]}
    v_add_u32 {vT[11]}, {MISC}, {vT[11]}
    s_lshl_b32 {sT[0]}, {sCh}, 6
    v_add_u32 {vT[4]}, {sT[0]}, {vT[9]}
    v_add_u32 {vT[4]}, {MISC}, {vT[4]}
    v_lshlrev_b32 {vT[5]}, 2, {vT[3]}
    v_add_u32 {vT[5]}, {sT[0]}, {vT[5]}
    v_add_u32 {vT[5]}, {MISC}, {vT[5]}
    v_add_u32 {vT[9]}, {MISC}, {vT[9]}
    v_mul_u32_u24 {vZo}, 1792, {vT[3]}
    v_lshl_add_u32 {vZo}, {vT[6]}, 3, {vZo}         ; m*1792 + g*8
    v_lshrrev_b32 {vT[0]}, 5, {vLane}               ; g>>1
    v_bfe_u32 {vT[1]}, {vLane}, 4, 1                ; g&1
    v_lshlrev_b32 {vT[2]}, 4, {vT[3]}               ; m*16
    v_lshl_add_u32 {vQo}, {vT[0]}, 9, {vT[2]}
    v_lshl_add_u32 {vQo}, {vT[1]}, 3, {vQo}         ; (g>>1)*512 + m*16 + (g&1)*8
    v_lshl_add_u32 {vVo}, {vT[1]}, 8, {vT[2]}
    v_lshl_add_u32 {vVo}, {vT[0]}, 3, {vVo}         ; (g&1)*256 + d*16 + (g>>1)*8
    s_waitcnt lgkmcnt(0)
    s_barrier
    """)
    for r in range(4): p(f"ds_read_b64 {RN[r]}, {vRa[r >> 1]} offset:{L_RS - MISC + (r & 1) * 128}")
    for u in (3, 4, 5): p(f"ds_read_b128 {CU[u]}, {vT[4]} offset:{L_CS - MISC + u*128}")
    p(f"ds_read_b128 {CU[6]}, {vT[9]} offset:{L_CS - MISC + 12*64}")
    for u in (0, 1): p(f"ds_read_b128 {CU[u]}, {vT[4]} offset:{L_CS - MISC + u*128}")
    p(f"ds_read_b32 {CU[2][0]}, {vT[5]} offset:{L_CS - MISC + 2*128}")
    for r in range(4):
        p(f"ds_read_b128 {R4[r]}, {vT[10 + (r >> 1)]} offset:{L_RS4 - MISC + (r & 1) * 64}")
        p(f"ds_read_b128 {N4[r]}, {vT[10 + (r >> 1)]} offset:{L_NM4 - MISC + (r & 1) * 64}")
    sGA = S.alloc("ga", 2); sGB = S.alloc("gb", 2); sOne = S.alloc("one", 2)
    sZb = S.alloc("zb", 2); sZs = S.alloc("zs", 2); sQ = S.alloc("q", 2)
    vGA = W[16:18]
    p(f"""
    v_mov_b32 {vGA[0]}, {f32(GA)}
    v_mov_b32 {vGA[1]}, {f32(GA)}
    s_mov_b32 {sGB[0]}, {f32(GB)}
    s_mov_b32 {sGB[1]}, {f32(GB)}
    s_mov_b32 {sOne[0]}, 1.0
    s_mov_b32 {sOne[1]}, 1.0
    s_lshl_b32 {sT[0]}, {sI}, 3
    s_add_u32 {sT[1]}, {sT[0]}, {sRow0}
    s_add_u32 {sT[2]}, {sT[0]}, {sRow1}
    s_mul_i32 {sT[3]}, {sT[1]}, {16*1792}
    s_mul_i32 {sT[4]}, {sT[2]}, {16*1792}
    s_lshl_b32 {sT[5]}, {sBig}, 1
    s_cmp_lt_u32 {sJ}, 8
    s_mov_b32 {sZb[0]}, {WS_Z1}
    s_cmov_b32 {sZb[0]}, {WS_Z2 - 1792}
    s_mov_b32 {sZs[0]}, {WS_Z2 - 1792}
    s_cmov_b32 {sZs[0]}, {WS_Z1}
    s_add_u32 {sZb[0]}, {sZb[0]}, {sT[5]}
    s_lshl_b32 {sT[5]}, {sSml}, 1
    s_add_u32 {sZs[0]}, {sZs[0]}, {sT[5]}
    s_add_u32 {sZb[1]}, {sZb[0]}, {sT[4]}
    s_add_u32 {sZb[0]}, {sZb[0]}, {sT[3]}
    s_add_u32 {sZs[1]}, {sZs[0]}, {sT[4]}
    s_add_u32 {sZs[0]}, {sZs[0]}, {sT[3]}
    s_lshl_b32 {sT[5]}, {sJ}, 1
    s_add_u32 {sT[5]}, {sT[5]}, {sCh}
    s_lshl_b32 {sT[5]}, {sT[5]}, 16
    s_lshl_b32 {sT[1]}, {sT[1]}, 9
    s_lshl_b32 {sT[2]}, {sT[2]}, 9
    s_add_u32 {sQ[0]}, {sT[5]}, {sT[1]}
    s_add_u32 {sQ[1]}, {sT[5]}, {sT[2]}
    s_lshl_b32 {sT[0]}, {sCh}, 5
    v_add_u32 {vT[0]}, {sT[0]}, {vZo}
    v_add_u32 {vT[1]}, {16*1792}, {vT[0]}
    v_add_u32 {vT[2]}, {16*1792}, {vZo}
    """)
    vZp = [vT[0], vT[1]]; vZ1 = [vZo, vT[2]]
    SS = [W[8+2*r:10+2*r] for r in range(4)]
    def gelu_tile(u, r):
        a = ACC[u][r]; rn = RN[r]; L = []
        for h in range(2):
            x = a[2*h:2*h+2]; t = W[4*h:4*h+2]; e = W[4*h+2:4*h+4]
            L.append([
              f"v_pk_mul_f32 {t}, {CU[u][2*h:2*h+2]}, {rn} op_sel:[0,1] op_sel_hi:[1,1]",
              f"v_pk_fma_f32 {x}, {x}, {rn}, {t} op_sel_hi:[1,0,1]",
              f"v_pk_mul_f32 {t}, {x}, {x}",
              f"v_pk_fma_f32 {t}, {t}, {sGB}, {vGA}",
              f"v_pk_mul_f32 {t}, {x}, {t}",
              f"v_exp_f32 {e[0]}, {t[0]}",
              f"v_exp_f32 {e[1]}, {t[1]}",
              f"v_pk_add_f32 {e}, {e}, {sOne}",
              f"v_rcp_f32 {e[0]}, {e[0]}",
              f"v_rcp_f32 {e[1]}, {e[1]}",
              f"v_pk_mul_f32 {x}, {x}, {e}"])
        for k in range(len(L[0])): p(L[0][k]); p(L[1][k])
    def zstore(u, r, base):
        a = ACC[u][r]
        off = {3: 0, 4: 64, 5: 0, 6: 64}[u]
        va = (vZp if u != 6 else vZ1)[r & 1]
        p(f"""
        v_cvt_pk_bf16_f32 {a[0]}, {a[0]}, {a[1]}
        v_cvt_pk_bf16_f32 {a[1]}, {a[2]}, {a[3]}
        buffer_store_dwordx2 {a[0:2]}, {va}, {srdW}, {base[r >> 1]} offen offset:{off}
        """)
    ZSUM = [R("v", XS.base, 2), R("v", CS.base, 2), R("v", CS.base + 2, 2), vT[6:8]]
    ZSQ = [W[8:10], W[10:12], W[12:14], W[14:16]]
    assert XS.base % 2 == 0
    p("s_waitcnt lgkmcnt(9)")
    if prof: p(f"s_memtime s[94:95]\ns_waitcnt lgkmcnt(0)\ns_sub_u32 s94, s94, s90\nv_writelane_b32 v250, s94, 17")
    p(f"s_cmp_lt_u32 {sJ}, 8\ns_cbranch_scc0 L_k1_e1")
    for var in range(2):
        p.label(f"L_k1_e{var}")
        z2u = (3, 4) if var == 0 else (5, 6)
        z1u = (5, 6) if var == 0 else (3, 4)
        b2 = sZb if var == 0 else sZs
        b1 = sZs if var == 0 else sZb
        first = [True] * 4
        for u in z2u:
            for r in range(len(ACC[u])):
                gelu_tile(u, r)
                a = ACC[u][r]
                if first[r]:
                    p(f"v_pk_add_f32 {ZSUM[r]}, {a[0:2]}, {a[2:4]}\nv_pk_mul_f32 {ZSQ[r]}, {a[0:2]}, {a[0:2]}\nv_pk_fma_f32 {ZSQ[r]}, {a[2:4]}, {a[2:4]}, {ZSQ[r]}")
                    first[r] = False
                else:
                    p(f"v_pk_add_f32 {ZSUM[r]}, {ZSUM[r]}, {a[0:2]}\nv_pk_fma_f32 {ZSQ[r]}, {a[0:2]}, {a[0:2]}, {ZSQ[r]}")
                    p(f"v_pk_add_f32 {ZSUM[r]}, {ZSUM[r]}, {a[2:4]}\nv_pk_fma_f32 {ZSQ[r]}, {a[2:4]}, {a[2:4]}, {ZSQ[r]}")
        for r in range(4):
            p(f"v_add_f32 {ZSUM[r][0]}, {ZSUM[r][0]}, {ZSUM[r][1]}\nv_add_f32 {ZSQ[r][0]}, {ZSQ[r][0]}, {ZSQ[r][1]}")
        for Z in (ZSUM, ZSQ):
            p(f"""
            v_permlane32_swap_b32 {Z[0][0]}, {Z[2][0]}
            v_permlane32_swap_b32 {Z[1][0]}, {Z[3][0]}
            v_add_f32 {Z[0][0]}, {Z[0][0]}, {Z[2][0]}
            v_add_f32 {Z[1][0]}, {Z[1][0]}, {Z[3][0]}
            v_permlane16_swap_b32 {Z[0][0]}, {Z[1][0]}
            v_add_f32 {Z[0][0]}, {Z[0][0]}, {Z[1][0]}
            """)
        p(f"""
        v_cmp_gt_u32 vcc, 32, {vLane}
        v_bfe_u32 {W[0]}, {vLane}, 4, 1
        v_cndmask_b32 {W[1]}, {vRa[1]}, {vRa[0]}, vcc
        v_lshl_add_u32 {W[1]}, {W[0]}, 7, {W[1]}
        ds_add_f32 {W[1]}, {ZSUM[0][0]} offset:{L_ACC - MISC}
        ds_add_f32 {W[1]}, {ZSQ[0][0]} offset:{L_ACC - MISC + 4}
        v_mov_b32 {W[2]}, {L_CNT}
        v_mov_b32 {W[3]}, 1
        s_waitcnt lgkmcnt(0)
        ds_add_u32 {W[2]}, {W[3]}
        """)
        if prof: p(f"s_memtime s[94:95]\ns_waitcnt lgkmcnt(0)\ns_sub_u32 s94, s94, s90\nv_writelane_b32 v250, s94, 18")
        for u in z1u:
            for r in range(len(ACC[u])):
                gelu_tile(u, r); zstore(u, r, b1)
        if prof: p(f"s_memtime s[94:95]\ns_waitcnt lgkmcnt(0)\ns_sub_u32 s94, s94, s90\nv_writelane_b32 v250, s94, 19")
        for r in range(4):
            p(f"v_mul_f32 {W[2*r]}, {f32(QS)}, {RN[r][0]}\nv_mul_f32 {W[2*r+1]}, {f32(QS)}, {RN[r][1]}")
        for u in (0, 1):
            if u == 1: p(f"s_add_u32 {sQ[0]}, {sQ[0]}, {WS_K}\ns_add_u32 {sQ[1]}, {sQ[1]}, {WS_K}")
            for r in range(4):
                a = ACC[u][r]; rn = W[2*r:2*r+2] if u == 0 else RN[r]
                for h in range(2):
                    t = W[8+2*h:10+2*h]
                    p(f"v_pk_mul_f32 {t}, {CU[u][2*h:2*h+2]}, {rn} op_sel:[0,1] op_sel_hi:[1,1]")
                for h in range(2):
                    t = W[8+2*h:10+2*h]
                    p(f"v_pk_fma_f32 {a[2*h:2*h+2]}, {a[2*h:2*h+2]}, {rn}, {t} op_sel_hi:[1,0,1]")
                p(f"""
                v_cvt_pk_bf16_f32 {a[0]}, {a[0]}, {a[1]}
                v_cvt_pk_bf16_f32 {a[1]}, {a[2]}, {a[3]}
                buffer_store_dwordx2 {a[0:2]}, {vQo}, {srdW}, {sQ[r >> 1]} offen offset:{(r & 1) * 256}
                """)
        p(f"s_add_u32 {sQ[0]}, {sQ[0]}, {WS_V - WS_K}\ns_add_u32 {sQ[1]}, {sQ[1]}, {WS_V - WS_K}")
        for r in range(4):
            a = ACC[2][r]
            for h in range(2):
                p(f"v_pk_mul_f32 {W[8+2*h:10+2*h]}, {N4[r][2*h:2*h+2]}, {CU[2][0:2]} op_sel_hi:[1,0]")
            for h in range(2):
                p(f"v_pk_fma_f32 {a[2*h:2*h+2]}, {a[2*h:2*h+2]}, {R4[r][2*h:2*h+2]}, {W[8+2*h:10+2*h]}")
            p(f"""
            v_cvt_pk_bf16_f32 {a[0]}, {a[0]}, {a[1]}
            v_cvt_pk_bf16_f32 {a[1]}, {a[2]}, {a[3]}
            buffer_store_dwordx2 {a[0:2]}, {vVo}, {srdW}, {sQ[r >> 1]} offen offset:{(r & 1) * 512}
            """)
        if prof: p(f"s_memtime s[94:95]\ns_waitcnt lgkmcnt(0)\ns_sub_u32 s94, s94, s90\nv_writelane_b32 v250, s94, 20")
        p("s_barrier")
        if prof: p(f"s_memtime s[94:95]\ns_waitcnt lgkmcnt(0)\ns_sub_u32 s94, s94, s90\nv_writelane_b32 v250, s94, 21")
        for r in range(4): p(f"ds_read_b64 {RN[r]}, {vRa[r >> 1]} offset:{L_R2 - MISC + (r & 1) * 128}")
        p("s_waitcnt lgkmcnt(0)")
        for u in z2u:
            for r in range(len(ACC[u])):
                a = ACC[u][r]
                for h in range(2):
                    p(f"v_pk_fma_f32 {a[2*h:2*h+2]}, {a[2*h:2*h+2]}, {RN[r]}, {RN[r]} op_sel:[0,0,1] op_sel_hi:[1,0,1]")
                zstore(u, r, b2)
        if var == 0: p("s_branch L_k1_cend")
    p.label("L_k1_cend")
    if prof:
        p(f"""
        s_memtime s[94:95]
        s_memrealtime s[96:97]
        s_waitcnt lgkmcnt(0)
        s_sub_u32 s94, s94, s90
        s_sub_u32 s96, s96, s92
        v_writelane_b32 v250, s94, 22
        v_writelane_b32 v250, s96, 23
        v_writelane_b32 v250, s92, 24
        s_lshl_b32 {sT[0]}, s2, 3
        s_add_u32 {sT[0]}, {sT[0]}, {sWave}
        s_lshl_b32 {sT[0]}, {sT[0]}, 8
        s_add_u32 {sT[0]}, {sT[0]}, {WS_ST + 524288}
        v_lshlrev_b32 {vT[4]}, 2, {vLane}
        buffer_store_dword v250, {vT[4]}, {srdW}, {sT[0]} offen
        """)
    p("s_endpgm")
    p.label("L_k1_load")
    sLw = S.alloc("lw"); sPitch = S.alloc("pitch"); sA = S.alloc("a"); sC = S.alloc("c", 3); sS = S.alloc("s"); sInc = S.alloc("inc")
    sDa = S.alloc("da"); sDb = S.alloc("db"); sMk = S.alloc("mk", 2); sSl = S.alloc("sl")
    vA = vT[4]; vB = vT[5]; vS = vT[6]
    p(f"""
    s_sub_u32 {sLw}, {sWave}, 4
    s_cmp_lt_u32 {sLw}, 2
    s_cselect_b32 {srdB[0]}, {sP[4]}, {sP[6]}
    s_cselect_b32 {srdB[1]}, {sP[5]}, {sP[7]}
    s_mov_b32 {sPitch}, 3584
    s_cmov_b32 {sPitch}, 3072
    s_and_b32 {srdB[1]}, {srdB[1]}, 0xffff
    s_lshl_b32 {srdB[2]}, {sPitch}, 9
    s_mov_b32 {srdB[3]}, 0x20000
    s_lshl_b32 {sInc}, {sPitch}, 5
    s_lshl_b32 {sT[0]}, {sJ}, 6
    s_lshl_b32 {sT[1]}, {sBig}, 1
    s_lshl_b32 {sT[2]}, {sSml}, 1
    s_add_u32 {sT[3]}, {sT[0]}, 1024
    s_add_u32 {sT[4]}, {sT[0]}, 2048
    s_add_u32 {sT[5]}, {sT[1]}, 64
    s_cmp_lt_u32 {sLw}, 2
    s_cselect_b32 {sC[0]}, {sT[0]}, {sT[1]}
    s_cselect_b32 {sC[1]}, {sT[3]}, {sT[5]}
    s_cselect_b32 {sC[2]}, {sT[4]}, {sT[2]}
    s_mov_b32 {sDb}, {OFF_B + 3*2048}
    s_cmov_b32 {sDb}, {OFF_B}
    s_add_u32 {sS}, {sT[2]}, 64
    s_and_b32 {sT[0]}, {sLw}, 1                 ; t16
    s_lshl_b32 {sT[1]}, {sT[0]}, 10
    s_add_u32 {sDb}, {sDb}, {sT[1]}
    s_lshl_b32 {sT[1]}, {sPitch}, 4
    s_mul_i32 {sT[1]}, {sT[1]}, {sT[0]}
    s_add_u32 {sC[0]}, {sC[0]}, {sT[1]}
    s_add_u32 {sC[1]}, {sC[1]}, {sT[1]}
    s_add_u32 {sC[2]}, {sC[2]}, {sT[1]}
    v_bfe_u32 {vT[0]}, {vLane}, 3, 1
    v_lshlrev_b32 {vT[1]}, 3, {vT[0]}
    v_bfe_u32 {vT[0]}, {vLane}, 5, 1
    v_lshl_add_u32 {vT[1]}, {vT[0]}, 2, {vT[1]}
    v_bfe_u32 {vT[0]}, {vLane}, 2, 1
    v_lshl_add_u32 {vT[1]}, {vT[0]}, 1, {vT[1]}
    v_bfe_u32 {vT[0]}, {vLane}, 4, 1
    v_add_u32 {vT[1]}, {vT[1]}, {vT[0]}
    v_mul_lo_u32 {vB}, {vT[1]}, {sPitch}
    v_lshlrev_b32 {vT[0]}, 1, {vT[0]}
    v_and_b32 {vT[1]}, 3, {vLane}
    v_xor_b32 {vT[0]}, {vT[0]}, {vT[1]}
    v_lshl_add_u32 {vB}, {vT[0]}, 4, {vB}
    v_bfe_u32 {vT[0]}, {vLane}, 1, 2
    v_bfe_u32 {vT[1]}, {vLane}, 4, 1
    v_lshl_add_u32 {vT[0]}, {vT[1]}, 2, {vT[0]}
    v_bfe_u32 {vT[1]}, {vLane}, 3, 1
    v_lshl_add_u32 {vT[0]}, {vT[1]}, 3, {vT[0]}
    v_bfe_u32 {vT[1]}, {vLane}, 5, 1
    v_lshl_add_u32 {vT[0]}, {vT[1]}, 4, {vT[0]}
    v_mul_u32_u24 {vS}, 3584, {vT[0]}
    v_and_b32 {vT[0]}, 1, {vLane}
    v_lshl_add_u32 {vS}, {vT[0]}, 4, {vS}
    v_bfe_u32 {vT[0]}, {vLane}, 4, 1
    v_bfe_u32 {vT[1]}, {vLane}, 5, 1
    v_lshlrev_b32 {vT[0]}, 1, {vT[0]}
    v_mul_u32_u24 {vT[1]}, 3, {vT[1]}
    v_xor_b32 {vT[0]}, {vT[0]}, {vT[1]}
    v_and_b32 {vT[1]}, 3, {vLane}
    v_xor_b32 {vT[0]}, {vT[0]}, {vT[1]}
    v_lshrrev_b32 {vT[1]}, 2, {vLane}
    v_lshlrev_b32 {vA}, 10, {vT[1]}
    v_lshl_add_u32 {vA}, {vT[0]}, 4, {vA}
    s_lshl_b32 {sA}, {sI}, 17
    s_lshl_b32 {sT[0]}, {sLw}, 15
    s_add_u32 {sA}, {sA}, {sT[0]}
    s_lshl_b32 {sDa}, {sLw}, 11
    s_lshl_b32 {sT[0]}, {sLw}, 4
    s_mov_b64 {sMk}, 0xffff
    s_lshl_b64 {sMk}, {sMk}, {sT[0]}
    s_mov_b32 {sSl}, 0
    """)
    def issue():
        p(f"""
        s_add_u32 m0, {sSl}, {sDa}
        s_add_u32 {sT[0]}, {sA}, 16384
        buffer_load_dwordx4 {vA}, {srdX}, {sA} offen lds
        s_add_u32 m0, m0, 1024
        s_add_u32 {sT[1]}, {sSl}, {sDb}
        buffer_load_dwordx4 {vA}, {srdX}, {sT[0]} offen lds
        s_mov_b32 m0, {sT[1]}
        s_add_u32 {sA}, {sA}, 64
        buffer_load_dwordx4 {vB}, {srdB}, {sC[0]} offen lds
        s_add_u32 m0, {sT[1]}, 2048
        s_add_u32 {sC[0]}, {sC[0]}, {sInc}
        buffer_load_dwordx4 {vB}, {srdB}, {sC[1]} offen lds
        s_add_u32 m0, {sT[1]}, 4096
        s_add_u32 {sC[1]}, {sC[1]}, {sInc}
        buffer_load_dwordx4 {vB}, {srdB}, {sC[2]} offen lds
        s_add_u32 m0, {sSl}, {OFF_S}
        s_mov_b64 exec, {sMk}
        s_add_u32 {sC[2]}, {sC[2]}, {sInc}
        buffer_load_dwordx4 {vS}, {srdI}, {sS} offen lds
        s_mov_b64 exec, -1
        s_add_u32 {sS}, {sS}, {32*3584}
        s_add_u32 {sSl}, {sSl}, {SLOT}
        s_cmp_eq_u32 {sSl}, {NS*SLOT}
        s_cselect_b32 {sSl}, 0, {sSl}
        """)
    p(f"""
    v_lshlrev_b32 {vT[0]}, 2, v0
    v_subrev_u32 {vT[0]}, 1024, {vT[0]}          ; (tid-256)*4 : 0..1020
    v_add_u32 {vT[0]}, {L_ACC}, {vT[0]}
    v_mov_b32 {vT[1]}, 0
    """)
    issued = 0
    RAMP = 2
    for _ in range(RAMP): issue(); issued += 1
    p(f"ds_write_b32 {vT[0]}, {vT[1]}\nds_write_b32 {vT[0]}, {vT[1]} offset:1024\ns_waitcnt lgkmcnt(0)")
    for n in range(NST):
        p(f"s_waitcnt vmcnt({6*(issued - n - 1)})\ns_barrier")
        lim = min(NST, n + NS)
        k = 0
        while issued < lim and k < 2:
            issue(); issued += 1; k += 1
    assert issued == NST
    p(f"s_cmp_lg_u32 {sWave}, 4\ns_cbranch_scc1 L_k1_end")
    ST = R("v", 32, 64)
    p(f"""
    s_barrier                                   ; B1
    v_mov_b32 {vT[0]}, {L_CNT}
    v_lshlrev_b32 {vT[2]}, 4, {vLane}
    s_lshl_b32 {sT[0]}, {sI}, 4
    s_add_u32 {sT[1]}, {sT[0]}, {sJ}
    s_lshl_b32 {sT[2]}, {sT[1]}, 10
    s_add_u32 {sT[2]}, {sT[2]}, {WS_ST}
    s_lshl_b32 {sT[3]}, {sT[0]}, 10
    s_add_u32 {sT[3]}, {sT[3]}, {WS_ST}
    v_add_u32 {vT[3]}, {L_ACC}, {vT[2]}
    """)
    p.label("L_k1_w1")
    p(f"""
    s_sleep 1
    ds_read_b32 {vT[1]}, {vT[0]}
    s_waitcnt lgkmcnt(0)
    v_readfirstlane_b32 {sT[4]}, {vT[1]}
    s_cmp_lt_u32 {sT[4]}, 256
    s_cbranch_scc1 L_k1_w1
    ds_read_b128 {vT[4:8]}, {vT[3]}
    v_mov_b32 {vT[8]}, 1
    s_waitcnt lgkmcnt(0)
    """)
    if prof: p(f"s_memtime s[94:95]\ns_waitcnt lgkmcnt(0)\ns_sub_u32 s94, s94, s90\nv_writelane_b32 v250, s94, 0")
    p(f"""
    buffer_store_dwordx4 {vT[4:8]}, {vT[2]}, {srdW}, {sT[2]} offen sc1
    s_waitcnt vmcnt(0)
    """)
    if prof: p(f"s_memtime s[94:95]\ns_waitcnt lgkmcnt(0)\ns_sub_u32 s94, s94, s90\nv_writelane_b32 v250, s94, 1")
    p(f"""
    s_mov_b64 exec, 1
    buffer_store_byte {vT[8]}, off, {srdD}, {sT[1]} sc1
    s_mov_b64 exec, -1
    s_mov_b32 {sN}, 0
    s_mov_b32 {sT[5]}, 0x01010101
    """)
    p.label("L_k1_w2")
    p(f"""
    {"s_sleep 8" if "sleep" in opts else ""}
    buffer_load_dwordx4 {vT[4:8]}, off, {srdD}, {sT[0]} sc1
    s_add_u32 {sN}, {sN}, 1
    s_waitcnt vmcnt(0)
    v_and_b32 {vT[4]}, {vT[4]}, {vT[5]}
    v_and_b32 {vT[6]}, {vT[6]}, {vT[7]}
    v_and_b32 {vT[4]}, {vT[4]}, {vT[6]}
    v_readfirstlane_b32 {sT[4]}, {vT[4]}
    s_cmp_gt_u32 {sN}, 0x400000
    s_cbranch_scc1 L_k1_w3
    s_cmp_lg_u32 {sT[4]}, {sT[5]}
    s_cbranch_scc1 L_k1_w2
    """)
    p.label("L_k1_w3")
    if prof: p(f"s_memtime s[94:95]\ns_waitcnt lgkmcnt(0)\ns_sub_u32 s94, s94, s90\nv_writelane_b32 v250, s94, 2")
    if prof: p(f"v_writelane_b32 v250, {sN}, 5")
    for j in range(16):
        p(f"buffer_load_dwordx4 {ST[4*j:4*j+4]}, {vT[2]}, {srdW}, {sT[3]} offen offset:{(j & 3) * 1024} sc1")
        if j & 3 == 3: p(f"s_add_u32 {sT[3]}, {sT[3]}, 4096")
    for j in range(1, 16):
        p(f"s_waitcnt vmcnt({15 - j})")
        p(f"v_pk_add_f32 {ST[0:2]}, {ST[0:2]}, {ST[4*j:4*j+2]}\nv_pk_add_f32 {ST[2:4]}, {ST[2:4]}, {ST[4*j+2:4*j+4]}")
    if prof: p(f"s_memtime s[94:95]\ns_waitcnt lgkmcnt(0)\ns_sub_u32 s94, s94, s90\nv_writelane_b32 v250, s94, 3")
    p(f"v_mov_b32 {vT[8]}, {f32(1/896)}")
    for h in range(2):
        s_, q_ = ST[2*h], ST[2*h+1]
        p(f"""
        v_mul_f32 {s_}, {vT[8]}, {s_}
        v_mul_f32 {vT[9]}, {s_}, {s_}
        v_fma_f32 {vT[9]}, {q_}, {vT[8]}, -{vT[9]}
        v_max_f32 {vT[9]}, 0, {vT[9]}
        v_add_f32 {vT[9]}, {f32(1e-5)}, {vT[9]}
        v_rsq_f32 {vT[4+2*h]}, {vT[9]}
        s_nop 0
        v_mul_f32 {vT[5+2*h]}, {s_}, {vT[4+2*h]}
        v_sub_f32 {vT[5+2*h]}, 0, {vT[5+2*h]}
        """)
    p(f"""
    v_add_u32 {vT[3]}, {L_R2}, {vT[2]}
    ds_write_b128 {vT[3]}, {vT[4:8]}
    s_waitcnt lgkmcnt(0)
    s_barrier                                   ; B3
    """)
    if prof: p("s_branch L_k1_cend")
    p.label("L_k1_end")
    p("s_endpgm")
    return V.next, S.next
```

```python
from asmlib import *
from common import *

NS = 8
SLOT = 16384
LDS_BYTES = NS * SLOT
NSTH = 14; NSTO = 8; NST = NSTH + NSTO

def emit_k3(p, prof=False, opts=()):
    V = Regs("v", 1, 128); S = Regs("s", 4, 100)
    vLane = V.alloc("lane"); vT = V.alloc("t", 8, 4)
    sP = S.alloc("ptrs", 12, 4)
    srdW = S.alloc("srdW", 4); srdX = S.alloc("srdX", 4); srdWo = S.alloc("srdWo", 4); srdWu = S.alloc("srdWu", 4); srdO = S.alloc("srdO", 4)
    sWave = S.alloc("wave"); sTb = S.alloc("tb"); sNb = S.alloc("nb"); sT = S.alloc("t", 4); sN = S.alloc("n")
    if prof: p("s_memtime s[60:61]\ns_memrealtime s[62:63]\nv_mov_b32 v120, 0")
    p(f"""
    s_load_dwordx2 {sP[0:2]}, s[0:1], {KA_WS}
    s_load_dwordx2 {sP[2:4]}, s[0:1], {KA_X}
    s_load_dwordx2 {sP[4:6]}, s[0:1], {KA_WO}
    s_load_dwordx2 {sP[6:8]}, s[0:1], {KA_WOUT}
    s_load_dwordx2 {sP[8:10]}, s[0:1], {KA_OUT}
    v_lshrrev_b32 {vT[0]}, 6, v0
    v_and_b32 {vLane}, 63, v0
    v_readfirstlane_b32 {sWave}, {vT[0]}
    s_and_b32 {sT[0]}, s2, 7
    s_lshr_b32 {sT[1]}, s2, 3
    s_lshr_b32 {sT[2]}, {sT[1]}, 3
    s_lshl_b32 {sTb}, {sT[0]}, 2
    s_add_u32 {sTb}, {sTb}, {sT[2]}
    s_and_b32 {sNb}, {sT[1]}, 7
    s_waitcnt lgkmcnt(0)
    """)
    for srd, i, size in ((srdW, 0, WS_END), (srdX, 2, 2048*1024), (srdWo, 4, 512*1024), (srdWu, 6, 896*1024), (srdO, 8, 2048*1024)):
        p(f"s_mov_b32 {srd[0]}, {sP[i]}\ns_and_b32 {srd[1]}, {sP[i+1]}, 0xffff\ns_mov_b32 {srd[2]}, {size}\ns_mov_b32 {srd[3]}, 0x20000")
    p(f"s_cmp_ge_u32 {sWave}, 4\ns_cbranch_scc1 L_k3_load")
    vWa = V.alloc("wa", 2); vAa = V.alloc("aa", 2); vWb = V.alloc("wb", 2); vAb = V.alloc("ab", 2); vO = V.alloc("o")
    A = [[V.alloc(f"A{b}{u}", 4, 4) for u in range(2)] for b in range(2)]
    B = [[V.alloc(f"B{b}{u}", 4, 4) for u in range(2)] for b in range(2)]
    ACC = [[[V.alloc(f"acc{z}{u}{tt}", 4, 4) for tt in range(2)] for u in range(2)] for z in range(2)]
    X = [[V.alloc(f"x{u}{tt}", 2, 2) for tt in range(2)] for u in range(2)]
    sWn = S.alloc("wn"); sWt = S.alloc("wt"); sOut = S.alloc("outoff"); sSlot = S.alloc("slot")
    p(f"""
    s_and_b32 {sWn}, {sWave}, 1
    s_lshr_b32 {sWt}, {sWave}, 1
    v_lshrrev_b32 {vT[0]}, 5, {vLane}            ; g>>1
    s_lshl_b32 {sT[0]}, {sWn}, 2
    v_add_u32 {vT[0]}, {sT[0]}, {vT[0]}
    v_lshlrev_b32 {vT[0]}, 10, {vT[0]}
    v_add_u32 {vT[0]}, 8192, {vT[0]}
    v_and_b32 {vT[1]}, 3, {vLane}
    v_lshl_add_u32 {vT[0]}, {vT[1]}, 3, {vT[0]}
    v_bfe_u32 {vT[1]}, {vLane}, 3, 2             ; r1 + 2*g0  -> *64
    v_lshl_add_u32 {vT[0]}, {vT[1]}, 6, {vT[0]}
    v_bfe_u32 {vT[1]}, {vLane}, 2, 1             ; r0
    v_lshl_add_u32 {vT[0]}, {vT[1]}, 8, {vT[0]}
    v_lshl_add_u32 {vWb[0]}, {vT[1]}, 5, {vT[0]} ; u=0: 2*r0*16
    v_xor_b32 {vWb[1]}, 32, {vWb[0]}
    v_and_b32 {vT[1]}, 15, {vLane}               ; t
    v_lshrrev_b32 {vT[2]}, 4, {vLane}            ; g
    v_bfe_u32 {vT[3]}, {vLane}, 1, 3
    v_xor_b32 {vT[3]}, {vT[3]}, {vT[2]}
    s_lshl_b32 {sT[0]}, {sWt}, 12
    v_lshlrev_b32 {vT[4]}, 7, {vT[1]}
    v_add_u32 {vT[4]}, {sT[0]}, {vT[4]}
    v_lshl_add_u32 {vAb[0]}, {vT[3]}, 4, {vT[4]}
    v_xor_b32 {vAb[1]}, 64, {vAb[0]}
    v_lshlrev_b32 {vO}, 10, {vT[1]}
    v_lshl_add_u32 {vO}, {vT[2]}, 3, {vO}
    s_lshl_b32 {sOut}, {sTb}, 16
    s_lshl_b32 {sT[0]}, {sWt}, 15
    s_add_u32 {sOut}, {sOut}, {sT[0]}
    s_lshl_b32 {sT[0]}, {sNb}, 7
    s_add_u32 {sOut}, {sOut}, {sT[0]}
    s_lshl_b32 {sT[0]}, {sWn}, 6
    s_add_u32 {sOut}, {sOut}, {sT[0]}
    s_add_u32 {sT[1]}, {sOut}, 16384
    """)
    for u in range(2):
        for tt in range(2):
            p(f"buffer_load_dwordx2 {X[u][tt]}, {vO}, {srdX}, {sOut if tt == 0 else sT[1]} offen offset:{32*u}")
    for z in range(2):
        for u in range(2):
            for tt in range(2):
                for i in range(4): p(f"v_mov_b32 {ACC[z][u][tt][i]}, 0")
    def reads(kk, buf):
        s = ""
        for u in range(2):
            s += f"ds_read_b64_tr_b16 {A[buf][u][0:2]}, {vWa[u]} offset:{kk*2048}\n"
            s += f"ds_read_b64_tr_b16 {A[buf][u][2:4]}, {vWa[u]} offset:{kk*2048 + 512}\n"
        for tt in range(2):
            s += f"ds_read_b128 {B[buf][tt]}, {vAa[kk]} offset:{tt*2048}\n"
        return s
    def mf(z, buf):
        s = ""
        for u in range(2):
            for tt in range(2):
                s += f"v_mfma_f32_16x16x32_bf16 {ACC[z][u][tt]}, {A[buf][u]}, {B[buf][tt]}, {ACC[z][u][tt]}\n"
        return s
    p(f"s_mov_b32 {sSlot}, 0\ns_mov_b32 {sN}, 0")
    for z, cnt in ((1, NSTH), (0, NST)):
        p.label(f"L_k3_c{z}")
        p(f"""
        v_add_u32 {vWa[0]}, {sSlot}, {vWb[0]}
        v_add_u32 {vWa[1]}, {sSlot}, {vWb[1]}
        v_add_u32 {vAa[0]}, {sSlot}, {vAb[0]}
        v_add_u32 {vAa[1]}, {sSlot}, {vAb[1]}
        s_add_u32 {sSlot}, {sSlot}, {SLOT}
        s_and_b32 {sSlot}, {sSlot}, {NS*SLOT-1}
        s_add_u32 {sN}, {sN}, 1
        s_barrier
        """)
        if prof: p(f"s_memtime s[70:71]\ns_waitcnt lgkmcnt(0)\ns_mov_b32 m0, {sN}\ns_sub_u32 s70, s70, s60\nv_writelane_b32 v120, s70, m0")
        p(reads(0, 0)); p(reads(1, 1))
        p("s_waitcnt lgkmcnt(6)"); p(mf(z, 0))
        p("s_waitcnt lgkmcnt(0)"); p(mf(z, 1))
        p(f"s_cmp_lt_u32 {sN}, {cnt}\ns_cbranch_scc1 L_k3_c{z}")
    p(f"s_waitcnt vmcnt(0)\ns_mov_b32 {sT[2]}, {f32(-LOG2E)}")
    for u in range(2):
        for tt in range(2):
            y = ACC[1][u][tt]; s = ACC[0][u][tt]; x = X[u][tt]
            for i in range(4): p(f"v_mul_f32 {vT[i]}, {sT[2]}, {y[i]}")
            for i in range(4): p(f"v_exp_f32 {vT[i]}, {vT[i]}")
            for i in range(4): p(f"v_mul_f32 {s[i]}, {s[i]}, {y[i]}")
            for i in range(4): p(f"v_add_f32 {vT[i]}, 1.0, {vT[i]}")
            for i in range(4): p(f"v_rcp_f32 {vT[i]}, {vT[i]}")
            p(f"""
            v_lshlrev_b32 {vT[4]}, 16, {x[0]}
            v_and_b32 {vT[5]}, 0xffff0000, {x[0]}
            v_lshlrev_b32 {vT[6]}, 16, {x[1]}
            v_and_b32 {vT[7]}, 0xffff0000, {x[1]}
            """)
            for i in range(4): p(f"v_fma_f32 {s[i]}, {s[i]}, {vT[i]}, {vT[4+i]}")
            p(f"v_cvt_pk_bf16_f32 {x[0]}, {s[0]}, {s[1]}\nv_cvt_pk_bf16_f32 {x[1]}, {s[2]}, {s[3]}")
            p(f"buffer_store_dwordx2 {x}, {vO}, {srdO}, {sOut if tt == 0 else sT[1]} offen offset:{32*u}")
    if prof:
        p(f"""
        s_memtime s[66:67]
        s_memrealtime s[68:69]
        s_waitcnt lgkmcnt(0)
        v_mov_b32 {vT[0]}, s60
        v_mov_b32 {vT[1]}, s60
        v_mov_b32 {vT[2]}, s66
        s_sub_u32 s68, s68, s62
        v_mov_b32 {vT[3]}, s68
        s_lshl_b32 {sT[0]}, s2, 3
        s_add_u32 {sT[0]}, {sT[0]}, {sWave}
        s_lshl_b32 {sT[0]}, {sT[0]}, 4
        s_add_u32 {sT[0]}, {sT[0]}, {WS_ST + 65536}
        v_mov_b32 {vT[4]}, 0
        buffer_store_dwordx4 {vT[0:4]}, {vT[4]}, {srdW}, {sT[0]} offen
        s_lshl_b32 {sT[0]}, s2, 3
        s_add_u32 {sT[0]}, {sT[0]}, {sWave}
        s_lshl_b32 {sT[0]}, {sT[0]}, 8
        s_add_u32 {sT[0]}, {sT[0]}, {WS_ST + 131072}
        v_lshlrev_b32 {vT[4]}, 2, {vLane}
        buffer_store_dword v120, {vT[4]}, {srdW}, {sT[0]} offen
        """)
    p("s_endpgm")
    p.label("L_k3_load")
    vAH = [vT[4], vT[5]]; vAO = [vT[6], vT[7]]; vWs = V.alloc("wsrc")
    sLw = S.alloc("lw"); sA = S.alloc("asrc"); sWsrc = S.alloc("wsrc"); sDst = S.alloc("dst"); sRow = S.alloc("row")
    p(f"""
    s_sub_u32 {sLw}, {sWave}, 4
    v_lshrrev_b32 {vT[0]}, 3, {vLane}
    v_and_b32 {vT[1]}, 7, {vLane}
    v_lshrrev_b32 {vT[2]}, 4, {vLane}
    v_xor_b32 {vT[1]}, {vT[1]}, {vT[2]}
    v_lshlrev_b32 {vT[1]}, 4, {vT[1]}
    v_mul_u32_u24 {vAH[0]}, 1792, {vT[0]}
    v_add_u32 {vAH[0]}, {vAH[0]}, {vT[1]}
    v_xor_b32 {vAH[1]}, 64, {vT[1]}
    v_mad_u32_u24 {vT[3]}, {vT[0]}, 1, 8
    v_mul_u32_u24 {vT[3]}, 1792, {vT[3]}
    v_add_u32 {vAH[1]}, {vAH[1]}, {vT[3]}
    v_lshl_add_u32 {vAO[0]}, {vT[0]}, 10, {vT[1]}
    v_xor_b32 {vAO[1]}, 64, {vAO[0]}
    v_add_u32 {vAO[1]}, 8192, {vAO[1]}
    v_bfe_u32 {vT[0]}, {vLane}, 3, 1
    v_lshlrev_b32 {vWs}, 13, {vT[0]}
    v_bfe_u32 {vT[0]}, {vLane}, 5, 1
    v_lshl_add_u32 {vWs}, {vT[0]}, 12, {vWs}
    v_bfe_u32 {vT[0]}, {vLane}, 2, 1
    v_lshl_add_u32 {vWs}, {vT[0]}, 11, {vWs}
    v_bfe_u32 {vT[0]}, {vLane}, 4, 1
    v_lshl_add_u32 {vWs}, {vT[0]}, 10, {vWs}
    v_lshlrev_b32 {vT[0]}, 1, {vT[0]}
    v_and_b32 {vT[1]}, 3, {vLane}
    v_xor_b32 {vT[0]}, {vT[0]}, {vT[1]}
    v_lshl_add_u32 {vWs}, {vT[0]}, 4, {vWs}
    s_lshl_b32 {sRow}, {sTb}, 6
    s_lshl_b32 {sT[0]}, {sLw}, 4
    s_add_u32 {sRow}, {sRow}, {sT[0]}
    s_mul_i32 {sA}, {sRow}, 1792
    s_add_u32 {sA}, {sA}, {WS_H}
    s_lshl_b32 {sWsrc}, {sLw}, 14
    s_lshl_b32 {sT[0]}, {sNb}, 7
    s_add_u32 {sWsrc}, {sWsrc}, {sT[0]}
    s_lshl_b32 {sDst}, {sLw}, 10
    """)
    def issue(st):
        z = st < NSTH
        slot = (st % NS) * SLOT
        va = vAH if z else vAO
        srd = srdWu if z else srdWo
        if st == NSTH:
            p(f"""
            s_lshl_b32 {sA}, {sRow}, 10
            s_add_u32 {sA}, {sA}, {WS_O}
            s_sub_u32 {sWsrc}, {sWsrc}, {NSTH*65536}
            """)
        p(f"""
        s_lshl_b32 {sT[0]}, {sDst}, 1
        s_add_u32 m0, {sT[0]}, {slot}
        s_add_u32 {sT[1]}, {sWsrc}, 64
        buffer_load_dwordx4 {va[0]}, {srdW}, {sA} offen lds
        s_add_u32 m0, {sT[0]}, {slot + 1024}
        s_nop 0
        buffer_load_dwordx4 {va[1]}, {srdW}, {sA} offen lds
        s_add_u32 m0, {sDst}, {slot + 8192}
        s_add_u32 {sA}, {sA}, 128
        buffer_load_dwordx4 {vWs}, {srd}, {sWsrc} offen lds
        s_add_u32 m0, {sDst}, {slot + 8192 + 4096}
        s_add_u32 {sWsrc}, {sWsrc}, 65536
        buffer_load_dwordx4 {vWs}, {srd}, {sT[1]} offen lds
        """)
    for st in range(NS - 1): issue(st)
    for n in range(NST):
        left = min(NST, n + NS - 1) - (n + 1)
        p(f"s_waitcnt vmcnt({4*left})\ns_barrier")
        if n + NS - 1 < NST: issue(n + NS - 1)
    p("s_endpgm")
    return V.next, S.next
```

```python
from asmlib import *
from common import *

ZS = 16384; WSZ = 8192; WBASE = 3 * ZS
LDS_BYTES = 3 * (ZS + WSZ)
NST = 32

def emit_spgemm(p, s_g, prof=False, opts=()):
    V = Regs("v", 1, 128); S = Regs("s", 8, 100)
    vLane = V.alloc("lane"); vT = V.alloc("t", 8, 4)
    sWs = S.alloc("ws", 2); sWsp = S.alloc("wsp", 2); sB = S.alloc("bsp", 2)
    srdW = S.alloc("srdW", 4); srdP = S.alloc("srdP", 4); srdB = S.alloc("srdB", 4)
    sWave = S.alloc("wave"); sTb = S.alloc("tb"); sFb = S.alloc("fb"); sT = S.alloc("t", 4); sN = S.alloc("n"); sIdx = S.alloc("idx"); sXcd = S.alloc("xcd")
    sZo = S.alloc("zo"); sWo = S.alloc("wo")
    if prof: p("s_memtime s[60:61]\ns_memrealtime s[62:63]")
    p(f"""
    s_load_dwordx2 {sWs}, s[0:1], {KA_WS}
    s_load_dwordx2 {sWsp}, s[0:1], {KA_WSP}
    s_load_dwordx2 {sB}, s[0:1], {KA_BSP}
    v_lshrrev_b32 {vT[0]}, 6, v0
    v_and_b32 {vLane}, 63, v0
    v_readfirstlane_b32 {sWave}, {vT[0]}
    s_and_b32 {sXcd}, {s_g}, 7
    s_lshr_b32 {sIdx}, {s_g}, 3
    s_lshr_b32 {sT[0]}, {sIdx}, 3
    s_lshl_b32 {sTb}, {sXcd}, 2
    s_add_u32 {sTb}, {sTb}, {sT[0]}            ; t-block 0..31
    s_and_b32 {sFb}, {sIdx}, 7
    s_waitcnt lgkmcnt(0)
    s_mov_b32 {srdW[0]}, {sWs[0]}
    s_and_b32 {srdW[1]}, {sWs[1]}, 0xffff
    s_mov_b32 {srdW[2]}, {WS_END}
    s_mov_b32 {srdW[3]}, 0x20000
    s_mov_b32 {srdP[0]}, {sWsp[0]}
    s_and_b32 {srdP[1]}, {sWsp[1]}, 0xffff
    s_mov_b32 {srdP[2]}, {2048*4096}
    s_mov_b32 {srdP[3]}, 0x20000
    s_mov_b32 {srdB[0]}, {sB[0]}
    s_and_b32 {srdB[1]}, {sB[1]}, 0xffff
    s_mov_b32 {srdB[2]}, 4096
    s_mov_b32 {srdB[3]}, 0x20000
    s_cmp_ge_u32 {sWave}, 6
    s_cbranch_scc1 L_sp_pref
    s_cmp_eq_u32 {sFb}, 7
    s_cbranch_scc1 L_sp_end
    s_cmp_ge_u32 {sWave}, 4
    s_cbranch_scc1 L_sp_load
    """)
    vZa = V.alloc("za"); vWa = V.alloc("wa", 4)
    A = [V.alloc(f"A{i}", 4, 4) for i in range(2)]
    B = [[V.alloc(f"B{i}{j}", 4, 4) for j in range(2)] for i in range(2)]
    ACC = [V.alloc(f"acc{j}", 16, 4) for j in range(2)]
    Z1 = [V.alloc(f"z1{j}", 8, 4) for j in range(2)]
    vB = V.alloc("bias", 2); vO = V.alloc("ooff")
    p(f"""
    s_setprio {0 if "lowprio" in opts else 2}
    v_lshrrev_b32 {vT[0]}, 5, {vLane}            ; h
    v_bfe_u32 {vT[1]}, {vLane}, 2, 2             ; r4
    v_lshl_add_u32 {vT[2]}, {vT[0]}, 3, {vT[1]}  ; 8h + r4
    v_lshlrev_b32 {vZa}, 8, {vT[2]}
    v_xor_b32 {vT[3]}, {sWave}, {vT[1]}
    v_lshl_add_u32 {vZa}, {vT[3]}, 6, {vZa}
    v_bfe_u32 {vT[3]}, {vLane}, 4, 1             ; mh
    v_lshl_add_u32 {vZa}, {vT[3]}, 5, {vZa}
    v_and_b32 {vT[3]}, 3, {vLane}
    v_lshl_add_u32 {vZa}, {vT[3]}, 3, {vZa}
    v_and_b32 {vT[1]}, 31, {vLane}               ; t
    v_bfe_u32 {vT[2]}, {vLane}, 1, 3             ; (t>>1)&7
    v_xor_b32 {vT[2]}, {vT[2]}, {vT[0]}
    v_lshlrev_b32 {vT[4]}, 7, {vT[1]}
    v_add_u32 {vT[4]}, {WBASE}, {vT[4]}
    """)
    for ks in range(4):
        p(f"v_xor_b32 {vT[3]}, {2*ks}, {vT[2]}\nv_lshl_add_u32 {vWa[ks]}, {vT[3]}, 4, {vT[4]}")
    p(f"""
    s_mul_i32 {sT[0]}, {sTb}, {64*1792}
    s_lshl_b32 {sT[1]}, {sFb}, 8
    s_add_u32 {sT[0]}, {sT[0]}, {sT[1]}
    s_lshl_b32 {sT[1]}, {sWave}, 6
    s_add_u32 {sZo}, {sT[0]}, {sT[1]}
    v_mul_u32_u24 {vO}, 1792, {vT[1]}
    v_lshl_add_u32 {vO}, {vT[0]}, 4, {vO}
    s_add_u32 {sT[0]}, {sZo}, {WS_Z1}
    s_add_u32 {sT[1]}, {sT[0]}, {32*1792}
    buffer_load_dwordx4 {Z1[0][0:4]}, {vO}, {srdW}, {sT[0]} offen
    buffer_load_dwordx4 {Z1[0][4:8]}, {vO}, {srdW}, {sT[0]} offen offset:32
    buffer_load_dwordx4 {Z1[1][0:4]}, {vO}, {srdW}, {sT[1]} offen
    buffer_load_dwordx4 {Z1[1][4:8]}, {vO}, {srdW}, {sT[1]} offen offset:32
    v_lshlrev_b32 {vT[5]}, 1, {vT[1]}
    s_lshl_b32 {sT[2]}, {sTb}, 7
    buffer_load_ushort {vB[0]}, {vT[5]}, {srdB}, {sT[2]} offen
    buffer_load_ushort {vB[1]}, {vT[5]}, {srdB}, {sT[2]} offen offset:64
    """)
    for j in range(2):
        for i in range(16): p(f"v_mov_b32 {ACC[j][i]}, 0")
    def reads(slot, ks, buf):
        zo = slot * ZS + ks * 16 * 256
        wo = slot * WSZ
        return f"""
        ds_read_b64_tr_b16 {A[buf][0:2]}, {vZa} offset:{zo}
        ds_read_b64_tr_b16 {A[buf][2:4]}, {vZa} offset:{zo + 1024}
        ds_read_b128 {B[buf][0]}, {vWa[ks]} offset:{wo}
        ds_read_b128 {B[buf][1]}, {vWa[ks]} offset:{wo + 4096}
        """
    def mf(buf):
        return f"""
        v_mfma_f32_32x32x16_bf16 {ACC[0]}, {A[buf]}, {B[buf][0]}, {ACC[0]}
        v_mfma_f32_32x32x16_bf16 {ACC[1]}, {A[buf]}, {B[buf][1]}, {ACC[1]}
        """
    def stage(slot):
        p("s_barrier")
        p(reads(slot, 0, 0))
        for ks in range(4):
            if ks < 3:
                p(reads(slot, ks + 1, (ks + 1) & 1))
                p("s_waitcnt lgkmcnt(4)")
            else:
                p("s_waitcnt lgkmcnt(0)")
            p(mf(ks & 1))
    p(f"s_mov_b32 {sN}, 0")
    p.label("L_sp_cloop")
    for slot in range(3): stage(slot)
    p(f"s_add_u32 {sN}, {sN}, 1\ns_cmp_lt_u32 {sN}, {NST//3}\ns_cbranch_scc1 L_sp_cloop")
    for slot in range(NST % 3): stage(slot)
    p(f"""
    s_waitcnt vmcnt(0)
    v_lshlrev_b32 {vB[0]}, 16, {vB[0]}
    v_lshlrev_b32 {vB[1]}, 16, {vB[1]}
    s_add_u32 {sT[0]}, {sZo}, {WS_H}
    s_add_u32 {sT[1]}, {sT[0]}, {32*1792}
    """)
    for j in range(2):
        for q in range(2):
            z = Z1[j][4*q:4*q+4]
            p(f"v_permlane32_swap_b32 {z[0]}, {z[2]}\nv_permlane32_swap_b32 {z[1]}, {z[3]}")
    for j in range(2):
        for i in range(16): p(f"v_add_f32 {ACC[j][i]}, {ACC[j][i]}, {vB[j]}")
        for q in range(2):
            z = Z1[j][4*q:4*q+4]
            for r in range(4):
                a0 = ACC[j][8*q + 2*r]; a1 = ACC[j][8*q + 2*r + 1]
                p(f"""
                v_lshlrev_b32 {vT[0]}, 16, {z[r]}
                v_and_b32 {vT[1]}, 0xffff0000, {z[r]}
                v_mul_f32 {a0}, {a0}, {vT[0]}
                v_mul_f32 {a1}, {a1}, {vT[1]}
                v_cvt_pk_bf16_f32 {z[r]}, {a0}, {a1}
                """)
            p(f"v_permlane32_swap_b32 {z[0]}, {z[2]}\nv_permlane32_swap_b32 {z[1]}, {z[3]}")
            p(f"buffer_store_dwordx4 {z}, {vO}, {srdW}, {sT[j]} offen offset:{32*q}")
    if prof:
        p(f"""
        s_memtime s[66:67]
        s_memrealtime s[68:69]
        s_waitcnt lgkmcnt(0)
        v_mov_b32 {vT[0]}, s60
        v_mov_b32 {vT[1]}, s60
        v_mov_b32 {vT[2]}, s66
        s_sub_u32 s68, s68, s62
        v_mov_b32 {vT[3]}, s68
        s_lshl_b32 {sT[0]}, {s_g}, 3
        s_add_u32 {sT[0]}, {sT[0]}, {sWave}
        s_lshl_b32 {sT[0]}, {sT[0]}, 4
        s_add_u32 {sT[0]}, {sT[0]}, {WS_ST + 32768}
        v_mov_b32 {vT[4]}, 0
        buffer_store_dwordx4 {vT[0:4]}, {vT[4]}, {srdW}, {sT[0]} offen
        """)
    p("s_endpgm")
    p.label("L_sp_load")
    vZs = vT[4]; vW0 = vT[5]; vW1 = vT[6]
    sLz = S.alloc("lz"); sLw = S.alloc("lw"); sK = S.alloc("k"); sZb = S.alloc("zb"); sWb = S.alloc("wb")
    p(f"""
    s_setprio 3
    v_lshrrev_b32 {vT[0]}, 4, {vLane}
    v_bfe_u32 {vT[1]}, {vLane}, 2, 2
    v_xor_b32 {vT[1]}, {vT[1]}, {vT[0]}
    v_mul_u32_u24 {vZs}, 1792, {vT[0]}
    v_lshl_add_u32 {vZs}, {vT[1]}, 6, {vZs}
    v_and_b32 {vT[1]}, 3, {vLane}
    v_lshl_add_u32 {vZs}, {vT[1]}, 4, {vZs}
    v_lshrrev_b32 {vT[1]}, 3, {vLane}
    v_and_b32 {vT[2]}, 7, {vLane}
    v_xor_b32 {vT[2]}, {vT[2]}, {vT[0]}
    v_lshlrev_b32 {vT[2]}, 4, {vT[2]}
    v_lshl_add_u32 {vW0}, {vT[1]}, 12, {vT[2]}
    v_xor_b32 {vW1}, 64, {vW0}
    s_sub_u32 {sT[0]}, {sWave}, 4
    s_mul_i32 {sZo}, {sT[0]}, {32*1792}
    s_lshl_b32 {sT[1]}, {sFb}, 8
    s_add_u32 {sZo}, {sZo}, {sT[1]}
    s_add_u32 {sZo}, {sZo}, {WS_Z2}
    s_lshl_b32 {sWo}, {sTb}, 18
    s_lshl_b32 {sT[1]}, {sT[0]}, 17
    s_add_u32 {sWo}, {sWo}, {sT[1]}
    s_lshl_b32 {sLz}, {sT[0]}, 13
    s_lshl_b32 {sLw}, {sT[0]}, 12
    s_add_u32 {sLw}, {sLw}, {WBASE}
    s_mov_b32 {sZb}, {sZo}
    s_mov_b32 {sWb}, {sWo}
    s_lshl_b32 {sK}, {sXcd}, {2 if "rot" in opts else 10}
    s_and_b32 {sK}, {sK}, 31
    s_mul_i32 {sT[1]}, {sK}, {64*1792}
    s_add_u32 {sZo}, {sZb}, {sT[1]}
    s_lshl_b32 {sT[1]}, {sK}, 7
    s_add_u32 {sWo}, {sWb}, {sT[1]}
    """)
    def issue(slot):
        for i in range(8):
            p(f"""
            s_add_u32 m0, {sLz}, {slot*ZS + i*1024}
            s_add_u32 {sT[2]}, {sZo}, {i*4*1792}
            buffer_load_dwordx4 {vZs}, {srdW}, {sT[2]} offen lds
            """)
        for i in range(4):
            p(f"""
            s_add_u32 m0, {sLw}, {slot*WSZ + i*1024}
            s_add_u32 {sT[2]}, {sWo}, {i*8*4096}
            buffer_load_dwordx4 {vW1 if i & 1 else vW0}, {srdP}, {sT[2]} offen lds
            """)
        p(f"""
        s_add_u32 {sK}, {sK}, 1
        s_and_b32 {sK}, {sK}, 31
        s_mul_i32 {sT[1]}, {sK}, {64*1792}
        s_add_u32 {sZo}, {sZb}, {sT[1]}
        s_lshl_b32 {sT[1]}, {sK}, 7
        s_add_u32 {sWo}, {sWb}, {sT[1]}
        """)
    issue(0); issue(1)
    p(f"s_mov_b32 {sN}, 0")
    p.label("L_sp_lloop")
    for slot in range(3):
        p("s_waitcnt vmcnt(12)\ns_barrier")
        issue((slot + 2) % 3)
    p(f"s_add_u32 {sN}, {sN}, 1\ns_cmp_lt_u32 {sN}, {NST//3}\ns_cbranch_scc1 L_sp_lloop")
    p("s_waitcnt vmcnt(12)\ns_barrier\ns_waitcnt vmcnt(0)\ns_barrier\ns_endpgm")
    p.label("L_sp_pref")
    if "prefw" in opts:
        p(f"""
        s_lshl_b32 {sT[0]}, {sIdx}, 1
        s_add_u32 {sT[0]}, {sT[0]}, {sWave}
        s_sub_u32 {sT[0]}, {sT[0]}, 6               ; j
        v_lshlrev_b32 {vT[0]}, 6, {vLane}           ; lane*64
        s_lshl_b32 {sWo}, {sXcd}, 20
        s_lshl_b32 {sT[1]}, {sT[0]}, 14
        s_add_u32 {sWo}, {sWo}, {sT[1]}
        """)
        for i in range(4):
            p(f"buffer_load_dword {vT[4 + i]}, {vT[0]}, {srdP}, {sWo} offen\ns_add_u32 {sWo}, {sWo}, 4096")
    elif "nopref" not in opts:
        p(f"""
        s_lshl_b32 {sT[0]}, {sIdx}, 1
        s_add_u32 {sT[0]}, {sT[0]}, {sWave}
        s_sub_u32 {sT[0]}, {sT[0]}, 6               ; j
        v_lshlrev_b32 {vT[0]}, 6, {vLane}           ; lane*64
        s_lshl_b32 {sZo}, {sT[0]}, 12
        s_add_u32 {sZo}, {sZo}, {WS_Z2}
        v_lshrrev_b32 {vT[1]}, 4, {vLane}
        v_and_b32 {vT[2]}, 15, {vLane}
        v_lshlrev_b32 {vT[1]}, 12, {vT[1]}
        v_lshl_add_u32 {vT[1]}, {vT[2]}, 6, {vT[1]}
        s_lshl_b32 {sWo}, {sXcd}, 20
        s_lshl_b32 {sT[1]}, {sT[0]}, 14
        s_add_u32 {sWo}, {sWo}, {sT[1]}
        """)
        seq = []
        for m in range(14):
            if m % 4 == 0 or m == 13: pass
        order = []
        zi = 0
        for kq in range(4):
            order.append(("w", kq))
            n = 4 if kq < 2 else 3
            for _ in range(n): order.append(("z", zi)); zi += 1
        assert zi == 14
        for n, (kind, i) in enumerate(order):
            if kind == "w": p(f"buffer_load_dword {vT[4 + n % 4]}, {vT[1]}, {srdP}, {sWo} offen offset:{i*1024}")
            else: p(f"buffer_load_dword {vT[4 + n % 4]}, {vT[0]}, {srdW}, {sZo} offen\ns_add_u32 {sZo}, {sZo}, {64*4096}")
            p("s_waitcnt vmcnt(2)")
    p.label("L_sp_end")
    p("s_endpgm")
    return V.next, S.next
```

```python
import sys
from asmlib import *
from common import *
import k1, k3, attn, spgemm
NAME = "recurrent_scan__softmax_full_mha__mixer_gmlp__prompt"
def build(path, prof=False, k1o=(), ao=("prio1",), go=("nopref", "rot", "lowprio"), k3o=()):
    hdr = open(f"cdna_kernels/{NAME}.s.ref").read().split("\n")
    head = [l for l in hdr if l.startswith(";") and "@launch" not in l and "Override launch" not in l and "grid=ceil" not in l]
    kernels = []
    p = Prog(); p("s_cmp_ge_u32 s2, 256\ns_cbranch_scc1 L_k1_exit"); k1.emit_k1(p, prof=prof, opts=k1o); p.label("L_k1_exit"); p("s_endpgm")
    kernels.append(("k1_kernel", p, 256, 512, k1.LDS_BYTES))
    p = Prog(); p("s_cmp_ge_u32 s2, 512\ns_cbranch_scc1 L_k2_exit\ns_cmp_ge_u32 s2, 256\ns_cbranch_scc1 L_k2_gemm")
    attn.emit_attn(p, prof=prof, exp_opts=ao); p.label("L_k2_gemm"); p("s_sub_u32 s3, s2, 256"); spgemm.emit_spgemm(p, "s3", prof=prof, opts=go)
    p.label("L_k2_exit"); p("s_endpgm")
    kernels.append(("k2_kernel", p, 512, 512, max(attn.NBUF * 16384, spgemm.LDS_BYTES)))
    p = Prog(); p("s_cmp_ge_u32 s2, 256\ns_cbranch_scc1 L_k3_exit"); k3.emit_k3(p, prof=prof, opts=k3o); p.label("L_k3_exit"); p("s_endpgm")
    kernels.append(("k3_kernel", p, 256, 512, k3.LDS_BYTES))
    txt = "\n".join(head) + "\n"
    body = ""; desc = ""
    for kn, p, g, b, lds in kernels:
        p.fix_hazards()
        mv, ms = p.max_regs()
        txt += f"; @launch kernel={kn} grid=({g},1,1) block=({b},1,1) lds={lds}\n"
        body += kernel_text(kn, p)
        desc += descriptor(kn, mv + 1, ms + 1)
        print(kn, "vgpr", mv + 1, "sgpr", ms + 1, "instrs", len(p.ins))
    txt += '.amdgcn_target "amdgcn-amd-amdhsa--gfx950"\n.text\n' + body + '.section .rodata,"a"\n' + desc
    open(path, "w").write(txt)
if __name__ == "__main__":
    build(f"cdna_kernels/{NAME}.s")
```

```python
import sys
def rep(n, f): return "\n".join(f(i) for i in range(n))
OPS = {
 "exp": lambda i: f"v_exp_f32 v{32+i}, v{16+i}",
 "fma": lambda i: f"v_fma_f32 v{32+i}, v{16+i}, v2, v3",
 "fmac": lambda i: f"v_fmac_f32 v{32+i}, v{16+i}, v2",
 "mul": lambda i: f"v_mul_f32 v{32+i}, v{16+i}, v2",
 "add": lambda i: f"v_add_f32 v{32+i}, v{16+i}, v2",
 "max": lambda i: f"v_max_f32 v{32+i}, v{16+i}, v2",
 "mov": lambda i: f"v_mov_b32 v{32+i}, v{16+i}",
 "addu": lambda i: f"v_add_u32 v{32+i}, v{16+i}, v2",
 "lshl": lambda i: f"v_lshlrev_b32 v{32+i}, 3, v{16+i}",
 "and": lambda i: f"v_and_b32 v{32+i}, v{16+i}, v2",
 "cnd": lambda i: f"v_cndmask_b32 v{32+i}, v{16+i}, v2, vcc",
 "cvtbf": lambda i: f"v_cvt_pk_bf16_f32 v{32+i}, v{16+i}, v{17+i}",
 "pkfma": lambda i: f"v_pk_fma_f32 v[{32+2*i}:{33+2*i}], v[{16}:{17}], v[2:3], v[4:5]",
 "pkfmah": lambda i: f"v_pk_fma_f16 v{32+i}, v{16+i}, v2, v3",
 "pkaddh": lambda i: f"v_pk_add_f16 v{32+i}, v{16+i}, v2",
 "pkmadu16": lambda i: f"v_pk_mad_u16 v{32+i}, v{16+i}, v2, v3",
 "rndne": lambda i: f"v_rndne_f32 v{32+i}, v{16+i}",
 "fract": lambda i: f"v_fract_f32 v{32+i}, v{16+i}",
 "cvti": lambda i: f"v_cvt_i32_f32 v{32+i}, v{16+i}",
 "or3": lambda i: f"v_or3_b32 v{32+i}, v{16+i}, v2, v3",
 "andor": lambda i: f"v_and_or_b32 v{32+i}, v{16+i}, v2, v3",
 "rcp": lambda i: f"v_rcp_f32 v{32+i}, v{16+i}",
 "fmamk": lambda i: f"v_fmamk_f32 v{32+i}, v{16+i}, 0x3f000000, v2",
 "fma_s": lambda i: f"v_fma_f32 v{32+i}, v{16+i}, s12, v3",
 "mfma32": lambda i: f"v_mfma_f32_32x32x16_bf16 v[{64+16*(i%4)}:{79+16*(i%4)}], v[4:7], v[8:11], v[{64+16*(i%4)}:{79+16*(i%4)}]",
 "mfma16": lambda i: f"v_mfma_f32_16x16x32_bf16 v[{64+4*(i%4)}:{67+4*(i%4)}], v[4:7], v[8:11], v[{64+4*(i%4)}:{67+4*(i%4)}]",
 "nop": lambda i: "s_nop 0",
 "dot2c": lambda i: f"v_dot2c_f32_bf16 v{32+i}, v{16+i}, v2",
 "dot2": lambda i: f"v_dot2_f32_bf16 v{32+i}, v{16+i}, v2, v{32+i}",
 "dot2h": lambda i: f"v_dot2c_f32_f16 v{32+i}, v{16+i}, v2",
 "cvtbf32": lambda i: f"v_cvt_f32_bf16 v{32+i}, v{16+i}",
 "pkadd": lambda i: f"v_pk_add_f32 v[{32+2*i}:{33+2*i}], v[{16}:{17}], v[2:3]",
 "dsr": lambda i: f"ds_read_b128 v[{48+4*(i%4)}:{51+4*(i%4)}], v15",
 "dsr64": lambda i: f"ds_read_b64 v[{48+2*(i%4)}:{49+2*(i%4)}], v15",
 "mfmaC": lambda i: f"v_mfma_f32_32x32x16_bf16 v[{64+16*(i%2)}:{79+16*(i%2)}], v[4:7], v[8:11], v[112:127]",
 "mfma0": lambda i: f"v_mfma_f32_32x32x16_bf16 v[{64+16*(i%2)}:{79+16*(i%2)}], v[4:7], v[8:11], 0",
 "mfmaA": lambda i: f"v_mfma_f32_32x32x16_bf16 v[96:111], v[4:7], v[8:11], v[96:111]",
 "wait": lambda i: "s_waitcnt lgkmcnt(3)",
}
def body(op, n=16): return rep(n, OPS[op])
def mix(*pairs):
    L = []; idx = {}
    tot = max(c for _, c in pairs)
    acc = {op: 0.0 for op, _ in pairs}
    for s in range(tot):
        for op, c in pairs:
            acc[op] += c / tot
            while acc[op] >= 1 - 1e-9:
                i = idx.get(op, 0); L.append(OPS[op](i % 16 if op[:4] != "mfma" else i)); idx[op] = i + 1; acc[op] -= 1
    return "\n".join(L)
K = {}
K["a_base"] = (mix(("exp", 16), ("cvtbf", 8), ("mfmaC", 1), ("mfmaA", 2)), None)
K["a_c0"] = (mix(("exp", 16), ("cvtbf", 8), ("mfma0", 1), ("mfmaA", 2)), None)
K["a_ds3"] = (mix(("exp", 16), ("cvtbf", 8), ("mfmaC", 1), ("mfmaA", 2), ("dsr", 3), ("wait", 1)), None)
K["a_ds6"] = (mix(("exp", 16), ("cvtbf", 8), ("mfmaC", 1), ("mfmaA", 2), ("dsr", 6), ("wait", 1)), None)
K["a_nop4"] = (mix(("exp", 16), ("cvtbf", 8), ("mfmaC", 1), ("mfmaA", 2), ("nop", 4)), None)
K["e_ds8"] = (mix(("exp", 16), ("dsr", 8), ("wait", 2)), None)
K["e_ds64"] = (mix(("exp", 16), ("dsr64", 8), ("wait", 2)), None)
K["c_ds8"] = (mix(("cvtbf", 16), ("dsr", 4), ("wait", 1)), None)
K["h_exp_ds"] = (body("exp"), mix(("dsr", 8), ("wait", 2)))
ITERS = 100
def gen():
    out = []
    names = list(K)
    for n in names:
        for w in (1, 2, 4):
            if K[n][1] is not None and w == 1: continue
            out.append(f"; @launch kernel={n}_kernel grid=(256,1,1) block=({256*w},1,1) lds=4096")
    out.append('.amdgcn_target "amdgcn-amd-amdhsa--gfx950"\n.text')
    for idx, n in enumerate(names):
        a, b = K[n]
        def loop(tag, body):
            return f"""L_{n}_{tag}:
{body}
{body}
{body}
{body}
  s_sub_u32 s6, s6, 1
  s_cmp_lg_u32 s6, 0
  s_cbranch_scc1 L_{n}_{tag}
"""
        code = f""".globl {n}_kernel
.p2align 8
.type {n}_kernel,@function
{n}_kernel:
  s_load_dwordx2 s[4:5], s[0:1], 64
  v_lshrrev_b32 v1, 6, v0
  v_cvt_f32_u32 v2, v0
  v_mul_f32 v2, 0x3a000000, v2
  s_mov_b32 s12, 0x3f000000
  v_readfirstlane_b32 s13, v1
""" + "\n".join(f"  v_mov_b32 v{r}, v2" for r in range(3, 128)) + f"""
  v_and_b32 v15, 63, v0
  v_lshlrev_b32 v15, 4, v15
  s_lshr_b32 s13, s13, 2
  s_and_b32 s13, s13, 1
  s_waitcnt lgkmcnt(0)
  s_barrier
  s_memtime s[8:9]
  s_waitcnt lgkmcnt(0)
  s_mov_b32 s6, {ITERS}
"""
        if b is None:
            code += loop("a", a)
        else:
            code += f"  s_cmp_eq_u32 s13, 1\n  s_cbranch_scc1 L_{n}_b\n" + loop("a", a) + f"  s_branch L_{n}_end\n" + loop("b", b) + f"L_{n}_end:\n"
        code += f"""  s_nop 15
  s_memtime s[10:11]
  s_waitcnt lgkmcnt(0)
  v_mov_b32 v2, s8
  v_mov_b32 v3, s10
  s_lshl_b32 s3, s2, 7
  v_lshlrev_b32 v1, 3, v1
  v_add_u32 v1, s3, v1
  global_store_dwordx2 v1, v[2:3], s[4:5]
  s_endpgm
"""
        out.append(code)
    out.append('.section .rodata,"a"')
    for n in names:
        out.append(f""".p2align 6
.amdhsa_kernel {n}_kernel
  .amdhsa_next_free_vgpr 128
  .amdhsa_next_free_sgpr 32
  .amdhsa_accum_offset 128
  .amdhsa_group_segment_fixed_size 0
  .amdhsa_kernarg_size 88
  .amdhsa_user_sgpr_count 2
  .amdhsa_user_sgpr_kernarg_segment_ptr 1
  .amdhsa_system_sgpr_workgroup_id_x 1
.end_amdhsa_kernel""")
    open("mb4.s", "w").write("\n".join(out) + "\n")
def run():
    from runner import build, cl, DeviceBuffer, sync, np, Events
    co, launches, asm = build("mb4.s")
    k = cl.AsmKernelList(co, launches, check=False)
    out = DeviceBuffer(65536)
    dbg = DeviceBuffer(1 << 20)
    ka = cl.pack_ptr_kernargs([out.ptr] * 9 + [dbg.ptr, out.ptr])
    for (kn, g, b, lds) in launches:
        f = k._funcs[kn]
        for _ in range(3):
            cl._launch_function(f, g, b, ka, lds)
        sync()
        ev = Events(); ev.start(); cl._launch_function(f, g, b, ka, lds); t = ev.stop()
        nw = b[0] // 64
        r = out.to_numpy(np.uint32, (256, 16, 2))[:, :nw].astype(np.int64)
        span = (r[:, :, 1].max(1) - r[:, :, 0].min(1))
        per = r[:, :, 1] - r[:, :, 0]
        w = b[0] // 256
        grp = 4 * ITERS
        het = K[kn[:-7]][1] is not None
        extra = ""
        if het:
            wi = (np.arange(nw) >> 2) & 1
            extra = f" A-dur/grp={np.median(per[:, wi==0])/grp:.1f} B-dur/grp={np.median(per[:, wi==1])/grp:.1f}"
        print(f"{kn:22s} w/SIMD={w} span/grp={np.median(span)/grp:8.1f} per-wave-grp={np.median(span)/grp/w:8.1f} wall={t:.1f}us clk~{np.median(span)/max(t-7,1)/1e3:.2f}GHz{extra}")
if __name__ == "__main__":
    gen() if sys.argv[1] == "gen" else run()
```
